```python
import torch

def _softmax(x, axis=-1):
    return torch.softmax(x, dim=axis)

def _gelu(x):
    return torch.nn.functional.gelu(x, approximate='tanh')

def _silu(x):
    return torch.nn.functional.silu(x)

def _sigmoid(x):
    return torch.sigmoid(x)

def _layernorm(x, axis=-1, eps=1e-05):
    m = x.mean(dim=axis, keepdim=True)
    v = x.var(dim=axis, keepdim=True, unbiased=False)
    return (x - m) / torch.sqrt(v + eps)

def _scatter_add(tgt, idx, src, axis=0):
    return tgt.clone().index_add_(axis, idx, src)

def _segment_sum(src, seg, n):
    out = torch.zeros((n,) + src.shape[1:], dtype=src.dtype)
    return out.index_add_(0, seg, src)

def _pad(x, pw):
    flat = tuple((v for pair in reversed(pw) for v in pair))
    return torch.nn.functional.pad(x, flat)
kernel_name = 'gated_mix__memory_aug_recurrent_mem_tr__glu_gated_swiglu__prompt'

def setup_inputs():

    _w = lambda a: (lambda t: t.to(torch.bfloat16) if t.is_floating_point() else t)(torch.as_tensor(a))

    def _A_setup():
        B, S, Dm = (1, 2048, 640)
        H, Dh = (32, 128)
        M, seg = (8, 32)
        seg = min(seg, S)
        S = S // seg * seg
        return {'x': _w((lambda *s: torch.randn(*s, dtype=torch.bfloat16) * 0.05)(B, S, Dm)), 'mem0': _w((lambda *s: torch.randn(*s, dtype=torch.bfloat16) * 0.8)(B, M, Dm)), 'Wq': _w((lambda *s: torch.randn(*s, dtype=torch.bfloat16) * 1.6)(Dm, H, Dh) * Dm ** (-0.5)), 'Wk': _w((lambda *s: torch.randn(*s, dtype=torch.bfloat16) * 1.6)(Dm, H, Dh) * Dm ** (-0.5)), 'Wv': _w((lambda *s: torch.randn(*s, dtype=torch.bfloat16) * 0.8)(Dm, H, Dh) * Dm ** (-0.5)), 'Wo': _w((lambda *s: torch.randn(*s, dtype=torch.bfloat16) * 0.8)(H, Dh, Dm) * (H * Dh) ** (-0.5)), 'seg_len': seg}
    _A_in = _A_setup()

    def _B_setup():
        B, S, D, F = (1, 2048, 640, 1728)
        return {'x': _w((lambda *s: torch.randn(*s, dtype=torch.bfloat16) * 0.05)(B, S, D)), 'w1': _w((lambda *s: torch.randn(*s, dtype=torch.bfloat16) * 3.2)(D, F) * (2.0 / D) ** 0.5), 'w3': _w((lambda *s: torch.randn(*s, dtype=torch.bfloat16) * 3.2)(D, F) * (2.0 / D) ** 0.5), 'w2': _w((lambda *s: torch.randn(*s, dtype=torch.bfloat16) * 3.2)(F, D) * (2.0 / F) ** 0.5)}
    _B_in = _B_setup()
    return {'A_x': _A_in['x'], 'A_mem0': _A_in['mem0'], 'A_Wq': _A_in['Wq'], 'A_Wk': _A_in['Wk'], 'A_Wv': _A_in['Wv'], 'A_Wo': _A_in['Wo'], 'A_seg_len': _A_in['seg_len'], 'B_x': _B_in['x'], 'B_w1': _B_in['w1'], 'B_w3': _B_in['w3'], 'B_w2': _B_in['w2'], 'gate_w': _w((lambda *s: torch.randn(*s, dtype=torch.bfloat16) * 0.05)(640) * 16.0)}

def reference(A_x, A_mem0, A_Wq, A_Wk, A_Wv, A_Wo, A_seg_len, B_x, B_w1, B_w3, B_w2, gate_w):

    def _A_ref(x, mem0, Wq, Wk, Wv, Wo, seg_len):
        B, S, Dm = x.shape
        H, Dh = (Wq.shape[1], Wq.shape[2])
        M = mem0.shape[1]
        scale = Dh ** (-0.5)
        n_seg = S // seg_len
        L = M + seg_len
        idx = torch.arange(L)
        mask = (idx[:, None] < M) | (idx[:, None] >= idx[None, :])
        mem = mem0
        outs = []
        for s in range(n_seg):
            xs = x[:, s * seg_len:(s + 1) * seg_len, :].clone()
            h = torch.concatenate([mem, xs], axis=1)
            q = torch.einsum('btd,dhe->bhte', h, Wq)
            k = torch.einsum('btd,dhe->bhte', h, Wk)
            v = torch.einsum('btd,dhe->bhte', h, Wv)
            scores = torch.einsum('bhqe,bhke->bhqk', q, k) * scale
            scores = torch.where(mask[None, None], scores, -1000000000.0)
            p = _softmax(scores, axis=-1)
            o = torch.einsum('bhqk,bhke->bhqe', p, v)
            o = torch.einsum('bhte,hed->btd', o, Wo)
            mem = o[:, :M, :].clone()
            outs.append(o[:, M:, :])
        return torch.concatenate(outs, axis=1)

    def _B_ref(x, w1, w3, w2):
        gate = torch.einsum('bsd,df->bsf', x, w1)
        up = torch.einsum('bsd,df->bsf', x, w3)
        h = _silu(gate) * up
        out = torch.einsum('bsf,fd->bsd', h, w2)
        return out
    x = A_x
    g = _sigmoid((x * gate_w).sum(-1, keepdims=True))
    a = _A_ref(x, A_mem0, A_Wq, A_Wk, A_Wv, A_Wo, A_seg_len)
    b = _B_ref(x, B_w1, B_w3, B_w2)
    return g * a + (1 - g) * b
```

```python
import sys; sys.path.insert(0,'tools'); sys.path.insert(0,'gen')
from gasm import *
from layout import *
from rec2 import wait_init

def poll(a, vaddr, vtmp, sneed, tag, cnt='s50', sleep=2):
    a(f"""
    L_{tag}_p:
    buffer_load_dword v{vtmp}, v{vaddr}, s[4:7], 0 offen sc1
    s_waitcnt vmcnt(0)
    v_cmp_gt_u32 vcc, {sneed}, v{vtmp}
    s_cbranch_vccz L_{tag}_ok
    s_sleep {sleep}
    s_add_u32 {cnt}, {cnt}, 1
    s_cmp_lt_u32 {cnt}, 0x40000
    s_cbranch_scc1 L_{tag}_p
    s_branch L_end
    L_{tag}_ok:
    """)

def gen_att(a, npar=2):
    Q = 32; K = 64; V = 96; KM = 128; VM = 144; S = 160; O = 192; P = 184
    a(f"""
    L_att:
    v_lshrrev_b32 v1, 6, v0
    v_readfirstlane_b32 s29, v1
    v_and_b32 v2, 63, v0
    v_lshlrev_b32 v3, 4, v2
    s_lshl_b32 s31, s30, 2
    s_add_u32 s31, s31, s29
    s_lshr_b32 s32, s31, 5                ; parity
    s_add_u32 s36, s31, {F_ATT}
    s_lshl_b32 s36, s36, 7
    s_add_u32 s36, s36, {FLAG_BASE}
    s_and_b32 s31, s31, 31                ; head
    v_and_b32 v4, 15, v2                  ; n
    v_lshrrev_b32 v5, 4, v2               ; g
    s_add_u32 s38, s31, {F_KV}
    s_lshr_b32 s39, s31, 1
    s_add_u32 s39, s39, {F_Q}
    v_and_b32 v8, 1, v2
    v_mov_b32 v6, s38
    v_mov_b32 v9, s39
    v_cmp_eq_u32 vcc, 1, v8
    v_cndmask_b32 v6, v6, v9, vcc
    v_lshlrev_b32 v6, 7, v6
    v_add_u32 v6, {FLAG_BASE}, v6
    s_lshl_b32 s38, s31, 1
    v_add_u32 v7, s38, v8
    v_lshlrev_b32 v7, 7, v7
    v_add_u32 v7, {FLAG_BASE}, v7
    v_and_b32 v8, 7, v2
    v_lshlrev_b32 v8, 4, v8
    v_lshl_add_u32 v8, v5, 8, v8
    v_and_b32 v9, 1, v5
    v_lshlrev_b32 v9, 3, v9
    v_lshl_add_u32 v9, v4, 4, v9
    v_mov_b32 v10, 0
    v_mov_b32 v11, 0xf149f2ca
    v_cmp_gt_u32 vcc, 2, v5
    v_cndmask_b32 v12, v10, v11, vcc
    v_mov_b32 v13, v12
    v_mov_b32 v14, v12
    v_mov_b32 v15, v12
    v_lshlrev_b32 v20, 2, v5
    """)
    for r in range(4):
        a(f"v_add_u32 v21, {r}, v20\nv_cmp_gt_u32 vcc, v21, v4\nv_cndmask_b32 v{16+r}, v10, v11, vcc")
    wait_init(a, 'att')
    a(f"""
    v_mov_b32 v20, 0x3f803f80
    v_mov_b32 v21, 0x3f803f80
    v_mov_b32 v22, 0x3f803f80
    v_mov_b32 v23, 0x3f803f80
    s_mov_b32 s43, 0x3e0293ee
    s_mov_b32 s42, s32                    ; seg
    s_mov_b32 s50, 0
    L_att_loop:
    s_add_u32 s44, s42, 1
    s_lshl_b32 s38, s42, 5
    s_add_u32 s38, s38, s31               ; seg*32 + h
    s_lshl_b32 s33, s38, 13
    s_add_u32 s33, s33, {Q_BASE}
    s_lshl_b32 s34, s38, 14
    s_add_u32 s34, s34, {KV_BASE}
    s_lshl_b32 s35, s38, 12
    s_add_u32 s35, s35, {KMV_BASE}
    s_lshl_b32 s37, s38, 13
    s_add_u32 s37, s37, {O_BASE}
    """)
    poll(a, 6, 24, 's44', 'att1', sleep=8)
    def ld8(dst, sb):
        for i in range(8):
            if i == 4: a(f"s_add_u32 {sb}, {sb}, 4096")
            a(f"buffer_load_dwordx4 {vr(dst+4*i,4)}, v3, s[4:7], {sb} offen offset:{(i&3)*1024} sc1")
    ld8(Q, 's33'); ld8(K, 's34'); a("s_add_u32 s34, s34, 4096"); ld8(V, 's34')
    a("s_waitcnt vmcnt(8)")
    for ks in range(4):
        q0 = vr(Q+4*ks,4); q1 = vr(Q+16+4*ks,4); k0 = vr(K+4*ks,4); k1 = vr(K+16+4*ks,4)
        a(f"v_mfma_f32_16x16x32_bf16 {vr(S+4,4)}, {k0}, {q0}, {vr(16,4) if ks==0 else vr(S+4,4)}")
        a(f"v_mfma_f32_16x16x32_bf16 {vr(S+12,4)}, {k0}, {q1}, {'0' if ks==0 else vr(S+12,4)}")
        a(f"v_mfma_f32_16x16x32_bf16 {vr(S+16,4)}, {k1}, {q1}, {vr(16,4) if ks==0 else vr(S+16,4)}")
    poll(a, 7, 24, 's44', 'att2', sleep=2)
    for ks in range(4): a(f"buffer_load_dwordx4 {vr(KM+4*ks,4)}, v8, s[4:7], s35 offen offset:{(ks>>1)*1024+(ks&1)*128} sc1")
    for et in range(8): a(f"buffer_load_dwordx2 {vr(VM+2*et,2)}, v9, s[4:7], s35 offen offset:{2048+et*256} sc1")
    for ks in range(4):
        a(f"s_waitcnt vmcnt({8+3-ks})")
        km = vr(KM+4*ks,4)
        a(f"v_mfma_f32_16x16x32_bf16 {vr(S,4)}, {km}, {vr(Q+4*ks,4)}, {vr(12,4) if ks==0 else vr(S,4)}")
        a(f"v_mfma_f32_16x16x32_bf16 {vr(S+8,4)}, {km}, {vr(Q+16+4*ks,4)}, {vr(12,4) if ks==0 else vr(S+8,4)}")
    T = [24, 26]; U = [25, 27]
    regs = [list(range(S, S+8)), list(range(S+8, S+20))]
    for qt in range(2):
        r = regs[qt]; t = T[qt]
        a(f"v_max3_f32 v{t}, v{r[0]}, v{r[1]}, v{r[2]}")
        for i in range(3, len(r)-1, 2): a(f"v_max3_f32 v{t}, v{t}, v{r[i]}, v{r[i+1]}")
        a(f"v_max_f32 v{t}, v{t}, v{r[-1]}")
    for pl in ('32', '16'):
        for qt in range(2): a(f"v_mov_b32 v{U[qt]}, v{T[qt]}")
        for qt in range(2): a(f"v_permlane{pl}_swap_b32 v{T[qt]}, v{U[qt]}")
        for qt in range(2): a(f"v_max_f32 v{T[qt]}, v{T[qt]}, v{U[qt]}")
    for qt in range(2): a(f"v_mul_f32 v{T[qt]}, s43, v{T[qt]}")
    for qt in range(2):
        for x in regs[qt]: a(f"v_fma_f32 v{x}, v{x}, s43, -v{T[qt]}")
    for x in range(S, S+20): a(f"v_exp_f32 v{x}, v{x}")
    PK = K
    for i in range(10): a(f"v_cvt_pk_bf16_f32 v{PK+i}, v{S+2*i}, v{S+2*i+1}")
    L = [S, S+4]
    a("s_waitcnt vmcnt(0)")
    a(f"v_mfma_f32_16x16x32_bf16 {vr(L[0],4)}, {vr(20,4)}, {vr(PK,4)}, 0")
    a(f"v_mfma_f32_16x16x32_bf16 {vr(L[1],4)}, {vr(20,4)}, {vr(PK+6,4)}, 0")
    def o(qt, et): return O + (qt*8+et)*4
    for et in range(8):
        if et == 3: a(f"v_mfma_f32_16x16x16_bf16 {vr(L[1],4)}, {vr(20,2)}, {vr(PK+4,2)}, {vr(L[1],4)}")
        a(f"v_mfma_f32_16x16x16_bf16 {vr(o(0,et),4)}, {vr(V+4*et,2)}, {vr(PK+2,2)}, 0")
        a(f"v_mfma_f32_16x16x32_bf16 {vr(o(1,et),4)}, {vr(V+4*et,4)}, {vr(PK+6,4)}, 0")
    for qt in range(2): a(f"v_rcp_f32 v{T[qt]}, v{L[qt]}")
    for et in range(8):
        a(f"v_mfma_f32_16x16x16_bf16 {vr(o(0,et),4)}, {vr(VM+2*et,2)}, {vr(PK,2)}, {vr(o(0,et),4)}")
        a(f"v_mfma_f32_16x16x16_bf16 {vr(o(1,et),4)}, {vr(VM+2*et,2)}, {vr(PK+4,2)}, {vr(o(1,et),4)}")
    a("s_add_u32 s38, s37, 4096")
    for j in range(4):
        for qt in range(2):
            d = Q + (j*2+qt)*4
            for h in range(2):
                c = o(qt, 2*j+h)
                for r in range(4): a(f"v_mul_f32 v{c+r}, v{T[qt]}, v{c+r}")
                a(f"v_cvt_pk_bf16_f32 v{d+2*h}, v{c}, v{c+1}\nv_cvt_pk_bf16_f32 v{d+2*h+1}, v{c+2}, v{c+3}")
            a(f"buffer_store_dwordx4 {vr(d,4)}, v3, s[4:7], {'s38' if j>=2 else 's37'} offen offset:{((j&1)*2+qt)*1024} sc1")
    a(f"""
    v_mov_b32 v24, s44
    s_waitcnt vmcnt(0)
    buffer_store_dword v24, off, s[4:7], s36 sc1
    s_add_u32 s42, s42, {npar}
    s_cmp_lt_u32 s42, {NSEG}
    s_cbranch_scc1 L_att_loop
    s_branch L_end
    """)
```

```python
import sys; sys.path.insert(0,'tools'); sys.path.insert(0,'gen')
from gasm import *
from layout import *

def W(i, ks):
    idx = (ks*4 + i)*4
    return ('a', idx) if idx < 256 else ('v', 192 + idx - 256)
def wr(i, ks, n=4, off=0):
    p, b = W(i, ks); return vr(b+off, n, p)

def gen_g1(a):
    ACC = 32; XF = 64
    def acc(i, tt): return ACC + (i*2+tt)*4
    a(f"""
    L_g1:
    v_lshrrev_b32 v1, 6, v0
    v_readfirstlane_b32 s29, v1
    v_and_b32 v2, 63, v0
    v_lshlrev_b32 v3, 4, v2               ; lane*16
    s_load_dwordx2 s[16:17], s[0:1], 0     ; x
    s_mov_b32 s18, 2621440
    s_mov_b32 s19, 0x20000
    s_mov_b32 s11, 0x20000
    s_mov_b32 s15, 0x20000
    s_cmp_eq_u32 s28, 1
    s_cbranch_scc1 L_g1_tq
    s_cmp_eq_u32 s28, 2
    s_cbranch_scc1 L_g1_tf
    s_load_dwordx2 s[8:9], s[0:1], 24
    s_load_dwordx2 s[12:13], s[0:1], 32
    s_mov_b32 s10, 5242880
    s_mov_b32 s14, 5242880
    s_mov_b32 s31, 8192
    s_lshl_b32 s32, s30, 8
    s_mov_b32 s33, s32
    s_lshl_b32 s34, s30, 14
    s_add_u32 s34, s34, {KV_BASE}
    s_mov_b32 s35, {32*16384}
    s_add_u32 s36, s30, {F_KV}
    s_branch L_g1_t
    L_g1_tq:
    s_load_dwordx2 s[8:9], s[0:1], 16
    s_load_dwordx2 s[12:13], s[0:1], 16
    s_mov_b32 s10, 5242880
    s_mov_b32 s14, 5242880
    s_mov_b32 s31, 8192
    s_lshl_b32 s32, s30, 9
    s_add_u32 s33, s32, 256
    s_lshl_b32 s34, s30, 14
    s_add_u32 s34, s34, {Q_BASE}
    s_mov_b32 s35, {32*8192}
    s_add_u32 s36, s30, {F_Q}
    s_branch L_g1_t
    L_g1_tf:
    s_load_dwordx2 s[8:9], s[0:1], 64
    s_load_dwordx2 s[12:13], s[0:1], 72
    s_mov_b32 s10, 2211840
    s_mov_b32 s14, 2211840
    s_mov_b32 s31, 3456
    s_lshl_b32 s32, s30, 8
    s_mov_b32 s33, s32
    s_lshl_b32 s34, s30, 13
    s_add_u32 s34, s34, {H_BASE}
    s_mov_b32 s35, {54*2048}
    s_add_u32 s36, s30, {F_F}
    L_g1_t:
    s_lshl_b32 s36, s36, 7
    s_add_u32 s36, s36, {FLAG_BASE}
    s_mov_b32 s37, 0
    s_cmp_eq_u32 s28, 2
    s_cselect_b32 s37, 2, s37
    s_lshr_b32 s38, s29, 1                 ; w>>1
    s_and_b32 s39, s29, 1                  ; w&1
    s_cmp_eq_u32 s28, 0
    s_cselect_b32 s37, s38, s37
    s_lshl_b32 s40, s30, 2
    s_add_u32 s40, s40, s29
    s_cmp_ge_u32 s40, 54
    s_cselect_b32 s40, 3, 2
    s_cmp_eq_u32 s28, 2
    s_cselect_b32 s37, s40, s37
    v_lshrrev_b32 v4, 4, v2
    v_lshlrev_b32 v5, 2, v4
    s_lshl_b32 s40, s38, 1
    v_or_b32 v5, s40, v5
    v_and_b32 v6, 15, v2
    v_xor_b32 v5, v5, v6
    v_lshlrev_b32 v5, 4, v5
    s_lshl_b32 s40, s29, 2
    v_add_u32 v4, s40, v4
    v_mul_lo_u32 v4, v4, s31
    v_add3_u32 v8, v4, v5, s32
    v_add3_u32 v9, v4, v5, s33
    s_lshl_b32 s41, s31, 4                 ; 16 rows
    s_lshl_b32 s45, s29, 10
    v_lshrrev_b32 v4, 4, v2                ; g
    v_bfe_u32 v5, v2, 2, 2                 ; r
    v_and_b32 v6, 3, v2                    ; c
    v_lshl_add_u32 v7, v4, 3, v5
    v_lshlrev_b32 v7, 8, v7                ; row*256
    v_and_b32 v10, 1, v4
    v_lshlrev_b32 v10, 1, v10
    v_lshl_or_b32 v10, v5, 2, v10          ; f
    s_cmp_eq_u32 s37, 1
    s_cbranch_scc1 L_g1_av
    s_cmp_ge_u32 s37, 2
    s_cbranch_scc1 L_g1_af
    s_lshl_b32 s40, s39, 3
    v_add_u32 v11, s40, v6
    v_xor_b32 v12, v11, v10
    v_lshl_add_u32 v12, v12, 4, v7
    v_add_u32 v11, 4, v11
    v_xor_b32 v14, v11, v10
    v_lshl_add_u32 v14, v14, 4, v7
    s_lshl_b32 s40, s38, 14
    v_add_u32 v12, s40, v12
    v_add_u32 v14, s40, v14
    v_add_u32 v13, 8, v12
    v_add_u32 v15, 8, v14
    s_branch L_g1_ad
    L_g1_af:
    s_lshl_b32 s40, s29, 2
    v_add_u32 v11, s40, v6
    v_xor_b32 v12, v11, v10
    v_lshl_add_u32 v12, v12, 4, v7
    v_add_u32 v13, 8, v12
    v_add_u32 v14, 16384, v12
    v_add_u32 v15, 16384, v13
    s_branch L_g1_ad
    L_g1_av:
    v_lshrrev_b32 v11, 1, v6
    s_lshl_b32 s40, s39, 3
    v_add_u32 v11, s40, v11
    v_and_b32 v16, 1, v6
    v_lshl_add_u32 v16, v16, 3, v7
    v_add_u32 v16, 16384, v16
    """)
    for i in range(4):
        a(f"v_add_u32 v17, {2*i}, v11\nv_xor_b32 v17, v17, v10\nv_lshl_add_u32 v{12+i}, v17, 4, v16")
    a("L_g1_ad:\ns_waitcnt lgkmcnt(0)")
    NB = 4
    def issue(b):
        buf = (b % NB) * 32768
        for mi, (srd, v) in enumerate((('s[8:11]', 8), ('s[12:15]', 9))):
            for j in range(4):
                a(f"s_add_u32 m0, s45, {buf + mi*16384 + j*4096}")
                a(f"buffer_load_dwordx4 v{v}, {srd}, 0 offen lds")
                a(f"v_add_u32 v{v}, s41, v{v}")
    for b in range(NB): issue(b)
    for b in range(10):
        rem = min(NB-1, 9-b)
        a(f"s_waitcnt vmcnt({8*rem})\ns_barrier")
        buf = (b % NB) * 32768
        for i in range(4): a(f"v_add_u32 v{20+i}, {buf}, v{12+i}")
        for kk in range(2):
            for i in range(4):
                for hh in range(2):
                    a(f"ds_read_b64_tr_b16 {wr(i, 2*b+kk, 2, 2*hh)}, v{20+i} offset:{(32*kk+4*hh)*256}")
            a("s_waitcnt lgkmcnt(0)")
        a("s_barrier")
        if b + NB < 10: issue(b + NB)
    a(f"""
    v_and_b32 v4, 15, v2
    s_lshl_b32 s40, s39, 4
    v_add_u32 v4, s40, v4
    v_mul_u32_u24 v4, 1280, v4
    v_lshrrev_b32 v5, 4, v2
    v_lshl_add_u32 v4, v5, 4, v4
    s_lshl_b32 s40, s38, 6
    v_add_u32 v8, s40, v4                  ; x voffset
    s_mov_b32 s42, 0                       ; seg
    s_mov_b32 s43, 0
    s_mov_b32 s46, 0
    s_mov_b32 s47, 40960
    s_mov_b32 s48, 81920
    s_lshl_b32 s40, s38, 13
    s_lshl_b32 s44, s39, 11
    s_add_u32 s44, s44, s40                ; K/Q: (w>>1)*8K + (w&1)*2K
    s_lshl_b32 s40, s39, 12
    s_add_u32 s40, s40, 8192
    s_cmp_eq_u32 s37, 1
    s_cselect_b32 s44, s40, s44
    s_lshl_b32 s40, s29, 11
    s_cmp_ge_u32 s37, 2
    s_cselect_b32 s44, s40, s44
    s_add_u32 s34, s34, s44
    s_mov_b32 s49, 0xbfb8aa3b              ; -log2(e)
    """)
    def xdma(bufreg):
        a(f"s_add_u32 s40, {bufreg}, s45\ns_min_u32 s44, s43, {63*40960}")
        for j in range(10):
            a(f"s_add_u32 m0, s40, {j*4096}")
            a(f"buffer_load_dwordx4 v8, s[16:19], s44 offen lds")
            a(f"s_add_u32 s44, s44, 128")
        a("s_add_u32 s43, s43, 40960")
    xdma('s46'); xdma('s47')
    a("s_waitcnt vmcnt(10)")
    a("L_g1_loop:")
    a("s_barrier")
    xdma('s48')
    a(f"v_add_u32 v4, s46, v3")
    a("s_cmp_eq_u32 s37, 1\ns_cbranch_scc1 L_g1_mv")
    def xrd(ks):
        for tt in range(2): a(f"ds_read_b128 {vr(XF+((ks%4)*2+tt)*4,4)}, v4 offset:{(ks*2+tt)*1024}")
    def mid():
        l = a.uniq('L_g1f')
        a(f"s_waitcnt vmcnt(10)\ns_barrier\ns_cmp_lg_u32 s29, 0\ns_cbranch_scc1 {l}")
        a(f"v_mov_b32 v5, s42\nbuffer_store_dword v5, off, s[4:7], s36 sc1\n{l}:")
    def mloop(vtype):
        xrd(0); xrd(1); xrd(2)
        for ks in range(20):
            a(f"s_waitcnt lgkmcnt({min(4, 2*(19-ks))})")
            for i in range(4):
                for tt in range(2):
                    x = vr(XF+((ks%4)*2+tt)*4,4); w = wr(i,ks); d = vr(acc(i,tt),4)
                    A, B = (x, w) if vtype else (w, x)
                    a(f"v_mfma_f32_16x16x32_bf16 {d}, {A}, {B}, {'0' if ks==0 else d}")
                if i == 0 and ks + 3 < 20: xrd(ks+3)
            if ks == 6: mid()
    mloop(False)
    a("s_cmp_ge_u32 s37, 2\ns_cbranch_scc1 L_g1_ef")
    O = 96
    for tt in range(2):
        for tp in range(2):
            o = O + (tt*2+tp)*4
            for t in range(2):
                c = acc(2*tp+t, tt)
                a(f"v_cvt_pk_bf16_f32 v{o+2*t}, v{c}, v{c+1}\nv_cvt_pk_bf16_f32 v{o+2*t+1}, v{c+2}, v{c+3}")
    a("s_add_u32 s40, s34, 4096")
    for tt in range(2):
        for tp in range(2):
            a(f"buffer_store_dwordx4 {vr(O+(tt*2+tp)*4,4)}, v3, s[4:7], {'s40' if tt else 's34'} offen offset:{tp*1024} sc1")
    a("s_waitcnt vmcnt(4)\ns_branch L_g1_next")
    a("L_g1_ef:\ns_cmp_eq_u32 s37, 3\ns_cbranch_scc1 L_g1_idle")
    for tt in range(2):
        for t in range(2):
            g = acc(t, tt); u = acc(2+t, tt); T = O + 16
            for r in range(4): a(f"v_mul_f32 v{T+r}, s49, v{g+r}")
            for r in range(4): a(f"v_exp_f32 v{T+r}, v{T+r}")
            for r in range(4): a(f"v_mul_f32 v{u+r}, v{u+r}, v{g+r}")
            for r in range(4): a(f"v_add_f32 v{T+r}, 1.0, v{T+r}")
            for r in range(4): a(f"v_rcp_f32 v{T+r}, v{T+r}")
            for r in range(4): a(f"v_mul_f32 v{u+r}, v{u+r}, v{T+r}")
            o = O + tt*4 + 2*t
            a(f"v_cvt_pk_bf16_f32 v{o}, v{u}, v{u+1}\nv_cvt_pk_bf16_f32 v{o+1}, v{u+2}, v{u+3}")
        a(f"buffer_store_dwordx4 {vr(O+tt*4,4)}, v3, s[4:7], s34 offen offset:{tt*1024} sc1")
    a("s_waitcnt vmcnt(2)\ns_branch L_g1_next")
    a("L_g1_idle:\ns_waitcnt vmcnt(0)\ns_branch L_g1_next")
    a("L_g1_mv:")
    mloop(True)
    for i in range(4):
        o = O + i*4
        for tt in range(2):
            c = acc(i, tt)
            a(f"v_cvt_pk_bf16_f32 v{o+2*tt}, v{c}, v{c+1}\nv_cvt_pk_bf16_f32 v{o+2*tt+1}, v{c+2}, v{c+3}")
    for i in range(4): a(f"buffer_store_dwordx4 {vr(O+i*4,4)}, v3, s[4:7], s34 offen offset:{i*1024} sc1")
    a("s_waitcnt vmcnt(4)")
    a(f"""
    L_g1_next:
    s_add_u32 s34, s34, s35
    s_mov_b32 s40, s46
    s_mov_b32 s46, s47
    s_mov_b32 s47, s48
    s_mov_b32 s48, s40
    s_add_u32 s42, s42, 1
    s_cmp_lt_u32 s42, {NSEG}
    s_cbranch_scc1 L_g1_loop
    s_waitcnt vmcnt(0)
    s_barrier
    s_cmp_lg_u32 s29, 0
    s_cbranch_scc1 L_end
    v_mov_b32 v5, s42
    buffer_store_dword v5, off, s[4:7], s36 sc1
    s_branch L_end
    """)
```

```python
import sys; sys.path.insert(0,'tools'); sys.path.insert(0,'gen')
from gasm import *
from layout import *
from att import poll

def gen_g3(a, nset=3, npar=2):
    AA = 16; AB = 32; ST = 48
    def WO(ks, t, n=4, off=0): return vr(ks*8 + t*4 + off, n, 'a')
    def WH(ks, t, n=4, off=0): return vr(144 + ks*8 + t*4 + off, n, 'v')
    a(f"""
    L_g3:
    v_lshrrev_b32 v1, 6, v0
    v_readfirstlane_b32 s29, v1
    v_and_b32 v2, 63, v0
    v_lshlrev_b32 v3, 4, v2
    s_load_dwordx2 s[8:9], s[0:1], 40
    s_load_dwordx2 s[12:13], s[0:1], 80
    s_load_dwordx2 s[16:17], s[0:1], 96
    s_mov_b32 s10, 5242880
    s_mov_b32 s11, 0x20000
    s_mov_b32 s14, 2211840
    s_mov_b32 s15, 0x20000
    s_mov_b32 s18, 2621440
    s_mov_b32 s19, 0x20000
    s_mul_i32 s31, s29, 14
    s_min_u32 s31, s31, 40
    v_lshrrev_b32 v4, 2, v2
    v_mul_u32_u24 v4, 1280, v4
    v_and_b32 v5, 3, v2
    v_lshl_add_u32 v4, v5, 4, v4
    s_lshl_b32 s38, s30, 6
    v_add_u32 v4, s38, v4
    s_mul_i32 s38, s29, {1024*1280}
    v_add_u32 v8, s38, v4
    s_mul_i32 s38, s31, {32*1280}
    v_add_u32 v9, s38, v4                 ; w2 voffset
    s_mul_i32 s45, s29, 40960
    v_lshrrev_b32 v6, 2, v2
    v_lshlrev_b32 v6, 6, v6
    v_lshl_add_u32 v6, v5, 4, v6
    v_add_u32 v10, s45, v6
    v_lshrrev_b32 v7, 4, v2
    v_lshl_add_u32 v11, v7, 8, v10
    s_waitcnt lgkmcnt(0)
    """)
    chunks = [('o', 8*c, 8) for c in range(4)] + [('h', 0, 8), ('h', 8, 6)]
    def issue(ci):
        kind, k0, n = chunks[ci]
        buf = (ci & 1) * 16384
        srd, v = ('s[8:11]', 8) if kind == 'o' else ('s[12:15]', 9)
        for j in range(2*n):
            a(f"s_add_u32 m0, s45, {buf + j*1024}")
            a(f"buffer_load_dwordx4 v{v}, {srd}, 0 offen lds")
            a(f"v_add_u32 v{v}, {16*1280}, v{v}")
    issue(0); issue(1)
    for ci, (kind, k0, n) in enumerate(chunks):
        nxt = 2*chunks[ci+1][2] if ci + 1 < len(chunks) else 0
        a(f"s_waitcnt vmcnt({nxt})")
        buf = (ci & 1) * 16384
        for kk in range(n):
            for t in range(2):
                for hh in range(2):
                    if kind == 'o': a(f"ds_read_b64_tr_b16 {WO(k0+kk,t,2,2*hh)}, v10 offset:{buf + kk*2048 + hh*1024 + 8*t}")
                    else: a(f"ds_read_b64_tr_b16 {WH(k0+kk,t,2,2*hh)}, v11 offset:{buf + kk*2048 + hh*256 + 8*t}")
            if kk % 2 == 1: a("s_waitcnt lgkmcnt(0)")
        if ci + 2 < len(chunks): issue(ci + 2)
    a("s_cmp_lg_u32 s29, 3\ns_cbranch_scc1 L_g3_nz")
    for i in range(16): a(f"v_mov_b32 v{144+i}, 0")
    a(f"""
    L_g3_nz:
    v_min_u32 v4, 13, v2
    v_add_u32 v4, {F_F}, v4
    v_lshlrev_b32 v4, 7, v4
    v_add_u32 v4, {FLAG_BASE}, v4
    v_and_b32 v5, 7, v2
    s_lshl_b32 s38, s29, 3
    s_add_u32 s38, s38, {F_ATT}
    v_add_u32 v5, s38, v5
    v_lshlrev_b32 v5, 7, v5
    v_add_u32 v5, {FLAG_BASE}, v5
    v_and_b32 v8, 15, v2
    v_lshlrev_b32 v9, 2, v8
    s_and_b32 s38, s29, 1
    s_lshl_b32 s38, s38, 4
    v_add_u32 v8, s38, v8
    v_mul_u32_u24 v8, 1280, v8
    v_lshl_add_u32 v8, v7, 4, v8
    s_lshl_b32 s38, s30, 6
    v_add_u32 v8, s38, v8
    s_lshl_b32 s38, s29, 12
    v_add_u32 v10, s38, v3
    s_and_b32 s38, s29, 1
    s_lshl_b32 s38, s38, 11
    v_add_u32 v11, s38, v3
    s_mov_b32 s42, s28
    s_mov_b32 s50, 0
    s_mov_b32 s46, 0
    s_barrier
    L_g3_loop:
    s_add_u32 s44, s42, 1
    s_mul_i32 s33, s42, {54*2048}
    s_lshl_b32 s38, s31, 11
    s_add_u32 s33, s33, s38
    s_add_u32 s33, s33, {H_BASE}
    s_lshl_b32 s34, s42, 18
    s_lshl_b32 s38, s29, 16
    s_add_u32 s34, s34, s38
    s_add_u32 s34, s34, {O_BASE}
    s_lshl_b32 s35, s42, 7
    s_add_u32 s35, s35, {G_BASE}
    s_and_b32 s38, s42, {npar-1}
    s_lshl_b32 s38, s38, 12
    v_add_u32 v6, s38, v5
    buffer_load_dword v12, v9, s[4:7], s35 offen
    buffer_load_dword v13, v9, s[4:7], s35 offen offset:64
    """)
    poll(a, 4, 14, 's44', 'g3a', sleep=8)
    def phase(n, sb, wf, acc):
        def ld(ks):
            if ks and ks % 2 == 0: a(f"s_add_u32 {sb}, {sb}, 4096")
            for tt in range(2):
                a(f"buffer_load_dwordx4 {vr(ST+(ks%12)*8+tt*4,4)}, v3, s[4:7], {sb} offen offset:{(ks&1)*2048+tt*1024} sc1")
        for ks in range(min(12, n)): ld(ks)
        for ks in range(n):
            a(f"s_waitcnt vmcnt({2*(min(n, ks+12)-ks-1)})")
            for tt in range(2):
                for t in range(2):
                    d = vr(acc+(tt*2+t)*4,4)
                    a(f"v_mfma_f32_16x16x32_bf16 {d}, {wf(ks,t)}, {vr(ST+(ks%12)*8+tt*4,4)}, {'0' if ks==0 else d}")
            if ks + 12 < n: ld(ks+12)
    phase(14, 's33', WH, AB)
    poll(a, 6, 14, 's44', 'g3b', sleep=2)
    phase(32, 's34', WO, AA)
    for tt in range(2):
        for i in range(8):
            x = tt*8+i
            a(f"v_sub_f32 v{AA+x}, v{AA+x}, v{AB+x}")
            a(f"v_fma_f32 v{AB+x}, v{12+tt}, v{AA+x}, v{AB+x}")
    a("v_add_u32 v14, s46, v10\nv_add_u32 v15, s46, v11")
    for i in range(4): a(f"ds_write_b128 v14, {vr(AB+4*i,4)} offset:{i*1024}")
    a("s_waitcnt lgkmcnt(0)\ns_barrier\ns_cmp_ge_u32 s29, 2\ns_cbranch_scc1 L_g3_next")
    for w in range(4):
        for t in range(2): a(f"ds_read_b128 {vr(ST+(w*2+t)*4,4)}, v15 offset:{w*4096+t*1024}")
    a("s_waitcnt lgkmcnt(0)")
    for i in range(8): a(f"v_add_f32 v{ST+i}, v{ST+i}, v{ST+8+i}\nv_add_f32 v{ST+16+i}, v{ST+16+i}, v{ST+24+i}")
    for i in range(8): a(f"v_add_f32 v{ST+i}, v{ST+i}, v{ST+16+i}")
    for i in range(4): a(f"v_cvt_pk_bf16_f32 v{ST+32+i}, v{ST+2*i}, v{ST+2*i+1}")
    a(f"""
    s_mul_i32 s38, s42, 40960
    buffer_store_dwordx4 {vr(ST+32,4)}, v8, s[16:19], s38 offen
    s_nop 1
    L_g3_next:
    s_xor_b32 s46, s46, 16384
    s_add_u32 s42, s42, {nset}
    s_cmp_lt_u32 s42, {NSEG}
    s_cbranch_scc1 L_g3_loop
    s_branch L_end
    """)
```

```python
MB = 1 << 20
MEM_BASE   = 0
MEM_COPY   = 2 * MB
MEM_STEP   = 32768
PART_BASE  = 8 * MB
PART_SLOT  = 2 * MB
KV_BASE    = 16 * MB
KMV_BASE   = 48 * MB
H_BASE     = 56 * MB
Q_BASE     = 64 * MB
O_BASE     = 80 * MB
FLAG_BASE  = 96 * MB
G_BASE     = FLAG_BASE + 65536
POL_BASE   = FLAG_BASE + 98304
SENT = 0xFFBFFFBF
F_REC, F_KV, F_Q, F_F, F_ATT = 0, 64, 96, 112, 128
FLAG_REC = FLAG_BASE
NSEG = 64
```

```python
import sys; sys.path.insert(0,'tools'); sys.path.insert(0,'gen')
from gasm import *
from layout import *

L_WO   = 0
L_STG  = 81920
L_MEM  = 81920
L_KV   = 94208
L_Z    = 131072
L_VM   = 135168
LDS_BYTES = 163840


def wq(t,b): return vr((t*10+b)*8, 8, 'a')
def wk(t,b):
    if t==0: return vr(160+b*8, 8, 'a')
    if b<2: return vr(240+b*8, 8, 'a')
    return vr(112+(b-2)*8, 8, 'v')
def wv(b): return vr(176+b*8, 8, 'v')
def sub2(rng, p):
    pre = rng[0]; lo = int(rng[2:rng.index(':')])
    return f'{pre}[{lo+2*p}:{lo+2*p+1}]'

V_IDX=1; V_L16=2; V_MEMG=3; V_ZW=4; V_ZR=5; V_VW=6; V_VR=7; V_PS4=8; V_PS2=9; V_RL0=10; V_PUB=11
V_CM=12; V_WA=13; V_T0=14; V_T1=15
V_SEL=16
V_BIG=0
M=20; ACC=60; KX=80

def gen_rec(a, nsteps=63, dbg=False, xkv=1, xkmv=1, tsub=24):
    a(f"""
    s_load_dwordx2 s[8:9], s[0:1], 16
    s_load_dwordx2 s[12:13], s[0:1], 24
    s_load_dwordx2 s[16:17], s[0:1], 32
    s_load_dwordx2 s[20:21], s[0:1], 40
    s_load_dwordx2 s[24:25], s[0:1], 8
    s_mov_b32 s10, 5242880
    s_mov_b32 s11, 0x20000
    s_mov_b32 s14, 5242880
    s_mov_b32 s15, 0x20000
    s_mov_b32 s18, 5242880
    s_mov_b32 s19, 0x20000
    s_mov_b32 s22, 5242880
    s_mov_b32 s23, 0x20000
    s_mov_b32 s26, 10240
    s_mov_b32 s27, 0x20000
    v_lshrrev_b32 v20, 6, v0
    v_readfirstlane_b32 s29, v20
    v_and_b32 v21, 63, v0            ; lane
    s_lshr_b32 s30, s28, 1
    s_and_b32 s31, s28, 1
    v_lshlrev_b32 v{V_L16}, 4, v21
    s_add_u32 s38, s28, 64
    s_cmp_lt_u32 s28, 16
    s_cselect_b32 s38, s38, -1
    s_cmp_eq_u32 s29, 1
    s_cselect_b32 s32, s38, -1
    s_cmp_eq_u32 s29, 0
    s_cselect_b32 s32, s28, s32
    """)
    a(f"""
    v_lshrrev_b32 v23, 4, v21          ; i>>4
    v_and_b32 v24, 1, v23
    s_lshl_b32 s38, s29, 1
    v_or_b32 v24, s38, v24             ; g
    v_lshlrev_b32 v24, 1, v24
    v_and_b32 v25, 15, v21
    v_xor_b32 v25, v25, v24
    v_lshlrev_b32 v25, 4, v25
    s_lshl_b32 s38, s29, 2
    v_add_u32 v23, s38, v23
    v_lshlrev_b32 v23, 13, v23
    s_lshl_b32 s38, s30, 8
    v_add3_u32 v22, v23, v25, s38
    v_lshrrev_b32 v23, 3, v21
    v_lshrrev_b32 v24, 2, v23
    s_and_b32 s38, s29, 1
    s_lshl_b32 s38, s38, 1
    v_or_b32 v24, s38, v24
    v_lshlrev_b32 v24, 1, v24
    v_and_b32 v25, 7, v21
    v_xor_b32 v25, v25, v24
    v_lshlrev_b32 v25, 4, v25
    s_lshl_b32 s38, s29, 3
    v_add_u32 v23, s38, v23
    v_lshlrev_b32 v23, 13, v23
    s_lshl_b32 s38, s30, 8
    s_lshl_b32 s39, s31, 7
    s_add_u32 s38, s38, s39
    v_add3_u32 v26, v23, v25, s38
    v_lshrrev_b32 v23, 5, v21          ; gb>>1
    v_bfe_u32 v24, v21, 4, 1           ; gb&1
    v_bfe_u32 v25, v21, 2, 1           ; r&1
    v_bfe_u32 v27, v21, 3, 1           ; r>>1
    v_lshlrev_b32 v28, 4, v23
    v_lshl_add_u32 v28, v24, 2, v28
    v_add_u32 v28, v28, v25
    v_lshl_add_u32 v28, v27, 3, v28    ; rowbase
    v_lshl_add_u32 v29, v24, 1, v25
    v_lshl_add_u32 v29, v27, 2, v29    ; g = b0 | b2<<1 | b3<<2
    v_and_b32 v30, 3, v21
    v_lshlrev_b32 v30, 3, v30          ; c*8
    s_lshl_b32 s38, s29, 1
    v_xor_b32 v31, s38, v29            ; (2w)^g
    v_lshlrev_b32 v31, 5, v31
    v_lshl_add_u32 v31, v28, 8, v31
    v_add_u32 v31, v31, v30
    v_xor_b32 v32, 32, v31             ; tile1
    v_lshrrev_b32 v33, 1, v29          ; b2 | b3<<1
    v_xor_b32 v33, s29, v33
    v_lshlrev_b32 v33, 5, v33
    v_lshl_add_u32 v33, v28, 7, v33
    v_add_u32 v33, v33, v30            ; v addr
    v_lshrrev_b32 v34, 2, v21          ; 4g + r
    v_mul_u32_u24 v34, 1280, v34
    s_mul_i32 s38, s29, 320
    v_add_u32 v34, s38, v34
    v_lshl_add_u32 v35, v30, 1, v34    ; + c*16
    v_add_u32 v36, v34, v30            ; + c*8
    s_mul_i32 s38, s29, 20480
    v_add_u32 v37, s38, v{V_L16}
    s_mul_i32 s44, s30, 163840
    s_mul_i32 s38, s31, 81920
    s_add_u32 s44, s44, s38
    s_lshl_b32 s45, s29, 10            ; w*1024
    s_waitcnt lgkmcnt(0)
    """)
    def issue_block(b):
        buf = L_STG + (b & 1) * 40960
        if b < 10:
            for mi, srd in enumerate(('s[8:11]', 's[12:15]')):
                for j in range(4):
                    a(f"s_add_u32 m0, s45, {buf + mi*16384 + j*4096}")
                    a(f"s_mov_b32 s38, {(64*b + 16*j) * 8192}")
                    a(f"buffer_load_dwordx4 v22, {srd}, s38 offen lds")
            for j in range(2):
                a(f"s_add_u32 m0, s45, {buf + 32768 + j*4096}")
                a(f"s_mov_b32 s38, {(64*b + 32*j) * 8192}")
                a(f"buffer_load_dwordx4 v26, s[16:19], s38 offen lds")
        else:
            for j in range(10):
                a(f"s_add_u32 m0, s45, {buf + j*4096}")
                a(f"s_add_u32 s38, s44, {(b-10)*40960 + j*4096}")
                a(f"s_add_u32 s38, s38, s45")
                a(f"buffer_load_dwordx4 v{V_L16}, s[20:23], s38 offen lds")
    def consume_block(b):
        buf = L_STG + (b & 1) * 40960
        if b < 10:
            a(f"v_add_u32 v38, {buf}, v31"); a(f"v_add_u32 v39, {buf}, v32"); a(f"v_add_u32 v40, {buf+32768}, v33")
            for p in range(4):
                ro = 32*(p>>1) + 2*(p&1)
                for t in range(2):
                    a(f"ds_read_b64_tr_b16 {sub2(wq(t,b),p)}, v{38+t} offset:{ro*256}")
                    a(f"ds_read_b64_tr_b16 {sub2(wk(t,b),p)}, v{38+t} offset:{16384+ro*256}")
                a(f"ds_read_b64_tr_b16 {sub2(wv(b),p)}, v40 offset:{ro*128}")
                if p == 1: a("s_waitcnt lgkmcnt(0)")
            a("s_waitcnt lgkmcnt(0)")
        else:
            ks = b - 10
            a(f"v_add_u32 v38, {buf}, v35"); a(f"v_add_u32 v39, {buf}, v36")
            for i in range(5):
                for hb in range(2):
                    r = 44 + hb*4
                    if i < 4: ad, co = 38, (64*(i>>1) + 32*hb + 4*(i&1))*2
                    else: ad, co = 39, (128 + 16*hb)*2
                    a(f"ds_read_b64_tr_b16 v[{r}:{r+1}], v{ad} offset:{co}")
                    a(f"ds_read_b64_tr_b16 v[{r+2}:{r+3}], v{ad} offset:{co+16*1280}")
                a("s_waitcnt lgkmcnt(0)")
                for hb in range(2):
                    r = 44 + hb*4
                    a(f"ds_write_b128 v37, v[{r}:{r+3}] offset:{L_WO + ((i*2+hb)*2+ks)*1024}")
                a("s_waitcnt lgkmcnt(0)")
    issue_block(0); issue_block(1)
    a(f"""
    s_cmp_lt_i32 s32, 0
    s_cbranch_scc1 L_rec_nom0
    v_and_b32 v41, 7, v21
    v_mul_u32_u24 v42, 1280, v41
    s_lshl_b32 s38, s32, 4
    buffer_load_dwordx4 v[44:47], v42, s[24:27], s38 offen
    v_bfe_u32 v43, v21, 3, 2           ; copy
    v_mov_b32 v48, s46
    v_mov_b32 v49, s47
    v_cmp_eq_u32 vcc, 1, v43
    v_cndmask_b32 v48, v48, v49, vcc
    v_mov_b32 v49, s48
    v_cmp_eq_u32 vcc, 2, v43
    v_cndmask_b32 v48, v48, v49, vcc
    v_mov_b32 v49, s49
    v_cmp_eq_u32 vcc, 3, v43
    v_cndmask_b32 v48, v48, v49, vcc
    v_lshl_add_u32 v48, v43, 21, v48
    v_lshl_add_u32 v48, v41, 4, v48
    s_lshl_b32 s38, s32, 7
    s_cmp_ge_u32 s32, 40
    s_cselect_b32 s39, {16384-5120}, 0
    s_add_u32 s38, s38, s39
    s_add_u32 s38, s38, {MEM_BASE}
    s_waitcnt vmcnt(0)
    s_mov_b32 s39, {SENT}
    v_mov_b32 v49, -1
    v_cmp_eq_u32 vcc, s39, v44
    v_cndmask_b32 v44, v44, v49, vcc
    v_cmp_eq_u32 vcc, s39, v45
    v_cndmask_b32 v45, v45, v49, vcc
    v_cmp_eq_u32 vcc, s39, v46
    v_cndmask_b32 v46, v46, v49, vcc
    v_cmp_eq_u32 vcc, s39, v47
    v_cndmask_b32 v47, v47, v49, vcc
    buffer_store_dwordx4 v[44:47], v48, s[4:7], s38 offen sc1
    s_waitcnt vmcnt(0)
    L_rec_nom0:
    """)
    for b in range(12):
        a("s_waitcnt vmcnt(10)" if b < 11 else "s_waitcnt vmcnt(0)")
        a("s_barrier")
        consume_block(b)
        a("s_barrier")
        if b + 2 < 12: issue_block(b + 2)
    a(f"""
    v_and_b32 v22, 15, v21             ; n
    v_lshrrev_b32 v23, 4, v21          ; g
    v_bfe_u32 v24, v21, 3, 1           ; n>>3
    v_and_b32 v25, 7, v21              ; n&7
    v_mov_b32 v26, 0x44444444
    v_mov_b32 v27, 0xeeeeeeee
    v_cmp_eq_u32 vcc, 1, v24
    v_cndmask_b32 v{V_IDX}, v26, v27, vcc
    v_mov_b32 v26, 0
    v_mov_b32 v27, 0x7149f2ca          ; 1e30
    v_cndmask_b32 v{V_BIG}, v26, v27, vcc
    v_mov_b32 v27, 0xf149f2ca          ; -1e30
    v_cmp_gt_u32 vcc, 2, v23
    v_cndmask_b32 v{V_CM}, v26, v27, vcc
    s_mul_i32 s38, s29, 20480
    v_add_u32 v{V_WA}, s38, v{V_L16}
    v_and_b32 v26, 1, v21
    v_lshlrev_b32 v26, 4, v26
    v_mov_b32 v27, 0x3f80
    v_lshlrev_b32 v27, v26, v27
    v_lshrrev_b32 v28, 1, v25
    v_mov_b32 v26, 0
    """)
    for k in range(4):
        a(f"v_cmp_eq_u32 vcc, {k}, v28"); a(f"v_cndmask_b32 v{V_SEL+k}, v26, v27, vcc")
    a(f"""
    ; mem DMA voffset: copy = xcc&3
    s_getreg_b32 s38, hwreg(HW_REG_XCC_ID)
    s_and_b32 s38, s38, 3
    s_cmp_eq_u32 s38, 1
    s_cselect_b32 s39, s47, s46
    s_cmp_eq_u32 s38, 2
    s_cselect_b32 s39, s48, s39
    s_cmp_eq_u32 s38, 3
    s_cselect_b32 s39, s49, s39
    s_lshl_b32 s38, s38, 21
    s_add_u32 s38, s38, s39
    s_add_u32 s38, s38, {MEM_BASE}
    v_add_u32 v{V_MEMG}, s38, v{V_L16}
    ; Z write: (32w + n)*32 + g*8
    s_lshl_b32 s38, s29, 10
    s_add_u32 s38, s38, {L_Z}
    v_lshlrev_b32 v26, 5, v22
    v_lshl_add_u32 v26, v23, 3, v26
    v_add_u32 v{V_ZW}, s38, v26
    v_bfe_u32 v26, v21, 2, 2
    v_lshl_add_u32 v26, v23, 3, v26
    v_lshlrev_b32 v26, 5, v26
    v_and_b32 v27, 3, v21
    v_lshl_add_u32 v26, v27, 3, v26
    v_add_u32 v{V_ZR}, {L_Z}, v26
    v_and_b32 v27, 1, v23
    v_lshlrev_b32 v26, 4, v22
    v_lshl_add_u32 v26, v27, 3, v26
    v_add_u32 v{V_VR}, {L_VM}, v26
    v_lshrrev_b32 v27, 1, v23
    v_lshl_add_u32 v26, v27, 2, v26
    s_lshl_b32 s38, s29, 8
    s_add_u32 s38, s38, {L_VM}
    v_add_u32 v{V_VW}, s38, v26
    v_lshl_add_u32 v26, v24, 2, v23
    s_mul_i32 s38, s29, 20
    v_add_u32 v26, s38, v26
    v_xor_b32 v27, s28, v26
    v_and_b32 v27, 63, v27
    v_lshlrev_b32 v26, 14, v26
    v_lshl_add_u32 v26, v25, 4, v26
    v_lshl_add_u32 v{V_PS4}, v27, 7, v26
    v_lshrrev_b32 v27, 1, v23
    v_lshl_add_u32 v26, v24, 1, v27
    s_add_u32 s38, s38, 16
    v_add_u32 v26, s38, v26
    v_xor_b32 v28, s28, v26
    v_and_b32 v28, 63, v28
    v_lshlrev_b32 v26, 14, v26
    v_lshl_add_u32 v26, v25, 4, v26
    v_and_b32 v27, 1, v23
    v_lshl_add_u32 v26, v27, 3, v26
    v_lshl_add_u32 v{V_PS2}, v28, 7, v26
    ; R load
    s_lshl_b32 s38, s32, 14
    v_add_u32 v{V_RL0}, s38, v{V_L16}
    v_lshrrev_b32 v26, 1, v23
    v_lshl_add_u32 v26, v26, 1, v24
    v_mov_b32 v28, s46
    v_mov_b32 v29, s47
    v_cmp_eq_u32 vcc, 1, v26
    v_cndmask_b32 v28, v28, v29, vcc
    v_mov_b32 v29, s48
    v_cmp_eq_u32 vcc, 2, v26
    v_cndmask_b32 v28, v28, v29, vcc
    v_mov_b32 v29, s49
    v_cmp_eq_u32 vcc, 3, v26
    v_cndmask_b32 v28, v28, v29, vcc
    v_lshl_add_u32 v28, v26, 21, v28
    v_lshl_add_u32 v28, v25, 4, v28
    v_lshl_add_u32 v28, v27, 3, v28
    s_lshl_b32 s38, s32, 7
    s_cmp_ge_u32 s32, 40
    s_cselect_b32 s39, {16384-5120}, 0
    s_add_u32 s38, s38, s39
    s_add_u32 s38, s38, {MEM_BASE+MEM_STEP}
    v_add_u32 v{V_PUB}, s38, v28
    s_mov_b32 s43, 0x3e0293ee          ; log2(e)/sqrt(128)
    s_mov_b32 s33, 0
    s_mov_b32 s34, 0
    s_add_u32 s35, s50, {PART_BASE}               ; slot s
    s_add_u32 s62, s51, {PART_BASE+PART_SLOT}     ; slot s+1
    s_add_u32 s63, s52, {PART_BASE+2*PART_SLOT}
    s_add_u32 s64, s65, {PART_BASE+3*PART_SLOT}   ; slot s+3 == s-1
    s_mul_i32 s38, s28, 10
    s_add_u32 s38, s38, s29
    s_lshr_b32 s46, s38, 3
    s_lshl_b32 s46, s46, 14
    s_and_b32 s39, s38, 7
    s_lshl_b32 s39, s39, 10
    s_add_u32 s46, s46, s39
    s_add_u32 s38, s38, 4
    s_lshr_b32 s47, s38, 3
    s_lshl_b32 s47, s47, 14
    s_and_b32 s39, s38, 7
    s_lshl_b32 s39, s39, 10
    s_add_u32 s47, s47, s39
    s_add_u32 s38, s38, 2
    s_lshr_b32 s48, s38, 3
    s_lshl_b32 s48, s48, 14
    s_and_b32 s39, s38, 7
    s_lshl_b32 s39, s39, 10
    s_add_u32 s48, s48, s39
    s_add_u32 s38, s38, 0
    s_mov_b32 s42, 0
    s_mov_b32 s96, 0
    s_lshl_b32 s53, s29, 10            ; block w  (w<5)
    s_add_u32 s54, s53, 4096
    s_cmp_ge_u32 s29, 1
    s_cselect_b32 s38, {16384-5120}, 0
    s_add_u32 s54, s54, s38            ; block w+4
    s_add_u32 s55, s53, {8192+16384-5120}  ; block w+8
    s_lshl_b32 s36, s30, 14
    s_add_u32 s36, s36, {KV_BASE}
    s_lshl_b32 s56, s31, 12
    s_mov_b32 s44, s43
    s_mov_b32 s45, s43
    s_mov_b32 s97, {SENT}
    s_lshl_b32 s59, s28, 7
    s_add_u32 s59, s59, {FLAG_REC}
    s_mov_b32 s37, {L_KV}
    s_lshl_b32 s57, s30, 12
    s_add_u32 s57, s57, {KMV_BASE}
    """)
    def kv_dma(bufreg, pieces):
        a(f"s_mov_b32 m0, {bufreg}")
        a(f"s_add_u32 s39, s36, s56")
        cur = 0
        for pc in pieces:
            if pc // 4 != cur:
                a(f"s_add_u32 m0, {bufreg}, {(pc//4)*4096}"); cur = pc // 4
                if pc < 8: a(f"s_add_u32 s38, s36, {(pc//4)*4096}")
                else: a(f"s_add_u32 s39, s39, 8192")
            so = 's36' if pc < 4 else ('s38' if pc < 8 else 's39')
            a(f"buffer_load_dwordx4 v{V_L16}, s[4:7], {so} offen offset:{(pc%4)*1024} sc1 lds")
    def delay(s):
        l = a.uniq('L_dl')
        if s != 's38': a(f"s_mov_b32 s38, {s}")
        a(f".p2align 3\n{l}:\ns_sub_u32 s38, s38, 1\ns_cbranch_scc0 {l}")
    a(f"s_mov_b32 s58, {L_KV+12288}\ns_mov_b32 s52, {L_KV+24576}")
    a(f"""
    s_add_u32 s9, s30, {F_KV}
    s_lshl_b32 s9, s9, 7
    s_add_u32 s9, s9, {FLAG_BASE}
    s_mov_b32 s10, 0
    L_rec_kvw:
    s_load_dword s8, s[4:5], s9 glc
    s_waitcnt lgkmcnt(0)
    s_cmp_ge_u32 s8, 2
    s_cbranch_scc1 L_rec_kvok
    s_sleep 4
    s_add_u32 s10, s10, 1
    s_cmp_lt_u32 s10, 0x40000
    s_cbranch_scc1 L_rec_kvw
    s_branch L_rec_done
    L_rec_kvok:
    """)
    a("s_cmp_lg_u32 s29, 2\ns_cbranch_scc1 L_rec_kv0")
    kv_dma('s37', range(12))
    a("L_rec_kv0:")
    a(f"s_add_u32 s36, s36, {32*16384}")
    a("s_cmp_lg_u32 s29, 3\ns_cbranch_scc1 L_rec_kv1")
    kv_dma('s58', range(12))
    a("L_rec_kv1:")
    a(f"s_add_u32 s36, s36, {32*16384}")
    a("s_add_u32 s56, s56, 4096")
    if dbg: a("s_memtime s[60:61]")
    a("s_waitcnt vmcnt(0) lgkmcnt(0)")
    a("s_barrier")
    NST = len(dbg) if dbg else 0
    def stamp(nm):
        if dbg and nm in dbg:
            i = dbg.index(nm); a(f"s_memtime s[{66+2*i}:{67+2*i}]")
    def stamp_end():
        if dbg:
            a("s_waitcnt lgkmcnt(0)")
            a("s_sub_u32 s38, s66, s60\ns_add_u32 s86, s86, s38")
            for i in range(1, NST): a(f"s_sub_u32 s38, s{66+2*i}, s{64+2*i}\ns_add_u32 s{86+i}, s{86+i}, s38")
            a(f"s_mov_b32 s60, s{66+2*(NST-1)}")
    if dbg:
        for i in range(NST): a(f"s_mov_b32 s{86+i}, 0")
        a("s_mov_b32 s61, s60")
    q = [ACC, ACC+4]; k = [ACC+8, ACC+12]; vv = ACC+16
    X = M; VX = M+16; VMr = M+32; S = ACC; P = ACC+12; T = V_T0; U = V_T1
    def smf(d, b, w): a(f"v_smfmac_f32_16x16x64_bf16 {vr(d,4)}, {vr(M+4*b,4)}, {w}, v{V_IDX}")
    def kmv_pub():
        a(f"v_and_b32 v{VX+8}, 32, v{V_L16}")
        a(f"v_mul_u32_u24 v{VX+8}, {(1024-16)//32 if False else 63}, v{VX+8}")
        a(f"v_lshrrev_b32 v{VX+8}, 1, v{VX+8}")
        a(f"s_lshl_b32 s39, s31, 11")
        a(f"v_add3_u32 v{VX+8}, v{VX+8}, v{V_ZR}, s39")
        a(f"v_add_u32 v{VX+9}, {L_VM}, v{V_L16}")
        a(f"ds_read_b64_tr_b16 {vr(X,2)}, v{VX+8} offset:16")
        a(f"ds_read_b64_tr_b16 {vr(X+2,2)}, v{VX+8} offset:{16+128}")
        a(f"ds_read_b128 {vr(X+4,4)}, v{VX+9}")
        a(f"s_lshl_b32 s39, s31, 10\ns_add_u32 s39, s39, s57")
        a("s_waitcnt lgkmcnt(0)")
    def kmv_st():
        a(f"buffer_store_dwordx4 {vr(X,4)}, v{V_L16}, s[4:7], s39 offen sc1")
        a(f"buffer_store_dwordx4 {vr(X+4,4)}, v{V_L16}, s[4:7], s39 offen offset:2048 sc1")
    def flag_pub(sval):
        a(f"v_mov_b32 v{V_T0}, {sval}\nv_mov_b32 v{VMr}, 0")
        a(f"buffer_store_dword v{V_T0}, v{VMr}, s[4:7], s59 offen sc1")
    def kv1(j):
        o = [f"s_add_u32 m0, s39, {4096*j}"]
        if j == 0: o = [f"s_add_u32 s39, s52, s53"] + o + [f"s_add_u32 s38, s36, s53"]
        elif j == 1: o += [f"s_add_u32 s38, s38, 4096"]
        else: o += [f"s_add_u32 s38, s38, s56"]
        o += [f"buffer_load_dwordx4 v{V_L16}, s[4:7], s38 offen sc1 lds"]
        return o
    SN = M+36
    def prep(kvbuf):
        a(f"v_add_u32 v{V_T0}, {kvbuf}, v{V_L16}")
        for i in range(8): a(f"ds_read_b128 {vr(KX+4*i,4)}, v{V_T0} offset:{i*1024}")
        for i in range(16): a(f"v_mov_b32 v{ACC+i}, 0")
        for i in range(4): a(f"v_mov_b32 v{vv+i}, s97")
        a("s_load_dword s8, s[4:5], s9 glc")
    prep('s37')
    def post(t):
        o = [f"v_permlane32_swap_b32 v{q[t]+r}, v{k[t]+r}" for r in range(4)]
        o += [f"v_add_f32 v{q[t]+r}, v{q[t]+r}, v{k[t]+r}" for r in range(4)]
        o += [f"v_cvt_pk_bf16_f32 v{k[t]}, v{q[t]}, v{q[t]+1}", f"v_cvt_pk_bf16_f32 v{k[t]+1}, v{q[t]+2}, v{q[t]+3}",
              f"ds_write_b64 v{V_ZW}, {vr(k[t],2)} offset:{t*512}"]
        return o
    a("L_rec_step:")
    a("s_lshr_b32 s50, s33, 2\ns_lshl_b32 s50, s50, 14\ns_add_u32 s50, s50, s35\ns_add_u32 s50, s50, 0x140000\ns_lshl_b32 s49, s28, 7\ns_add_u32 s49, s49, s50")
    a("s_add_u32 s51, s34, s53\ns_add_u32 s65, s34, s54\ns_add_u32 s39, s34, s55")
    a(f"v_add_u32 v{V_T1}, {L_MEM}, v{V_L16}")
    stamp(0)
    a("s_cmp_lt_u32 s29, 2\ns_cbranch_scc1 L_rec_no3")
    a(f"s_and_b32 s99, s29, 1\ns_mul_i32 m0, s99, 5120\ns_add_u32 m0, m0, {L_MEM}\ns_lshl_b32 s99, s99, 14\ns_add_u32 s99, s99, s34")
    a("s_mov_b32 s38, s40")
    delay('s38')
    stamp('A0')
    for i in range(4): a(f"buffer_load_dwordx4 v{V_MEMG}, s[4:7], s99 offen offset:{i*1024} sc1 lds")
    a(f"s_add_u32 m0, m0, 4096\ns_add_u32 s99, s99, 4096\nbuffer_load_dwordx4 v{V_MEMG}, s[4:7], s99 offen sc1 lds")
    a("L_rec_no3:")
    a("s_waitcnt vmcnt(0) lgkmcnt(0)")
    stamp('A1')
    a("L_rec_go:")
    a("s_barrier")
    stamp(1)
    for b in range(10): a(f"ds_read_b128 {vr(M+4*b,4)}, v{V_T1} offset:{b*1024}")
    a("s_memrealtime s[98:99]")
    fill = {j: [] for j in range(40)}
    fill[9] += ["s_and_b32 s98, s98, 0x7fffffff"]
    chk = [f"v_max3_u32 v{V_T0}, v{M}, v{M+1}, v{M+2}"]
    for i in range(3, 39, 2): chk.append(f"v_max3_u32 v{V_T0}, v{V_T0}, v{M+i}, v{M+i+1}")
    chk += [f"v_max_u32 v{V_T0}, v{V_T0}, v{M+39}", f"v_cmp_eq_u32 vcc, s97, v{V_T0}"]
    for x, op in enumerate(chk): fill[6 + x].append(op)
    fill[28] += ["s_cbranch_vccnz L_rec_failA", f"v_mov_b32 v{V_T0}, s98"]
    fill[29] += ["s_cmp_lg_u32 s29, 1", "s_cbranch_scc1 L_rec_nts", f"buffer_store_dword v{V_T0}, off, s[4:7], s49 sc1", "L_rec_nts:"]
    for j in range(3):
        fill[12+4*j] += (["s_cmp_lt_u32 s29, 2", "s_cbranch_scc1 L_rec_nr3"] if j == 2 else []) + [f"s_add_u32 s38, s63, s{46+j}", f"buffer_store_dwordx4 {vr(vv,4)}, v{V_L16}, s[4:7], s38 offen sc1"] + (["L_rec_nr3:"] if j == 2 else [])
    p0 = post(0)
    for x, op in enumerate(p0[:4]): fill[27 + x + (1 if x else 0) + (1 if x else 0)].append(op)
    fill[33] += p0[4:6]; fill[34] += p0[6:8]; fill[35] += p0[8:10]; fill[36] += [p0[10], f"v_mov_b32 v{vv}, 0"]
    fill[10] += ["s_add_u32 s11, s33, 3", "s_min_u32 s11, s11, 64"]
    fill[36] += ["s_cmp_lt_u32 s8, s11", "s_cbranch_scc1 L_rec_kvslow", "L_rec_kvgo:"]
    for j in range(3): fill[37+j] += kv1(j) + [f"v_mov_b32 v{vv+1+j}, 0"]
    fill[39].append(f"v_add_u32 v{V_T0}, s37, v{V_L16}")
    n = 0
    for t in range(2):
        for b in range(10):
            for d, w in ((q[t], wq(t,b)), (k[t], wk(t,b))):
                if t == 0 and n % 2 == 0 and n <= 8: a(f"s_waitcnt lgkmcnt({9-b if n < 8 else 0})")
                smf(d, b, w)
                for op in fill[n]: a(op)
                n += 1
    stamp(2)
    for op in post(1): a(op)
    for b in range(0, 4):
        smf(vv, b, wv(b))
        if b == 0: a(f"v_lshlrev_b32 v{U}, 3, v{V_L16}")
        if b == 1: a(f"s_cmp_lt_i32 s32, 0\ns_cbranch_scc1 L_rec_ntl\nbuffer_load_dword v{U}, v{U}, s[4:7], s50 offen sc1\nL_rec_ntl:")
    a("s_waitcnt lgkmcnt(0)")
    a("s_barrier")
    stamp(3)
    for ks in range(4):
        a(f"ds_read_b64_tr_b16 {vr(X+4*ks,2)}, v{V_ZR} offset:{ks*1024}")
        a(f"ds_read_b64_tr_b16 {vr(X+4*ks+2,2)}, v{V_ZR} offset:{ks*1024+128}")
        smf(vv, 4+ks, wv(4+ks))
    for b in range(8, 10):
        a(f"v_mov_b32 v{S+8+2*(b-8)}, v{V_CM}"); a(f"v_mov_b32 v{S+9+2*(b-8)}, v{V_CM}")
        smf(vv, b, wv(b))
    vpost = [f"v_permlane32_swap_b32 v{vv}, v{vv+2}", f"v_permlane32_swap_b32 v{vv+1}, v{vv+3}",
             f"v_add_f32 v{vv}, v{vv}, v{vv+2}", f"v_add_f32 v{vv+1}, v{vv+1}, v{vv+3}",
             f"v_cvt_pk_bf16_f32 v{vv}, v{vv}, v{vv+1}", f"ds_write_b32 v{V_VW}, v{vv}",
             f"v_mov_b32 v{ACC+18}, 0x3f803f80", f"v_mov_b32 v{ACC+19}, 0x3f803f80"]
    vxr = [f"ds_read_b128 {vr(VX+4*i,4)}, v{V_T0} offset:{8192+i*1024}" for i in range(4)]
    sfill = [[vxr[0]], [vxr[1]], [vxr[2]], [vxr[3]], [vpost[0]], [vpost[1]], vpost[2:4], [vpost[4]], [vpost[5]], vpost[6:8], [], []]
    n = 0
    for ks in range(4):
        if ks == 0: a("s_waitcnt lgkmcnt(6)")
        if ks == 1: a("s_waitcnt lgkmcnt(3)")
        xo = vr(X+4*ks,4)
        for ins in (f"v_mfma_f32_16x16x32_bf16 {vr(S+8,4)}, {xo}, {xo}, {vr(S+8,4)}",
                    f"v_mfma_f32_16x16x32_bf16 {vr(S,4)}, {vr(KX+4*ks,4)}, {xo}, {'0' if ks==0 else vr(S,4)}",
                    f"v_mfma_f32_16x16x32_bf16 {vr(S+4,4)}, {vr(KX+16+4*ks,4)}, {xo}, {'0' if ks==0 else vr(S+4,4)}"):
            a(ins)
            for op in sfill[n]: a(op)
            n += 1
    stamp(4)
    a(f"s_cmp_ge_u32 s33, {nsteps}\ns_cbranch_scc1 L_rec_last")
    def frag(f):
        if f < 8: return KX+4*f
        if f < 14: return VX+4*(f-8)
        return KX+4*(f-14)
    def rdfrag(f): return f"ds_read_b128 {vr(frag(f),4)}, v{V_WA} offset:{L_WO+f*1024}"
    for f in (0, 1, 4, 5): a(rdfrag(f))
    a(f"""
    v_max3_f32 v{T}, v{S+8}, v{S+9}, v{S+10}
    v_max3_f32 v{P}, v{S+11}, v{S}, v{S+1}
    v_max3_f32 v{T}, v{T}, v{S+2}, v{S+3}
    v_max3_f32 v{P}, v{P}, v{S+4}, v{S+5}
    v_max3_f32 v{T}, v{T}, v{S+6}, v{S+7}
    v_max_f32 v{T}, v{T}, v{P}
    v_mov_b32 v{P}, v{T}
    {rdfrag(2)}
    {rdfrag(3)}
    v_permlane32_swap_b32 v{T}, v{P}
    v_max_f32 v{T}, v{T}, v{P}
    v_mov_b32 v{P}, v{T}
    s_waitcnt lgkmcnt(6)
    s_barrier
    v_permlane16_swap_b32 v{T}, v{P}
    v_max_f32 v{T}, v{T}, v{P}
    v_fma_f32 v{T}, v{T}, s43, v{V_BIG}
    """)
    stamp(5)
    for i in range(0, 12, 2): a(f"v_pk_fma_f32 {vr(S+i,2)}, {vr(S+i,2)}, s[44:45], {vr(T,2)} op_sel_hi:[1,1,0] neg_lo:[0,0,1] neg_hi:[0,0,1]")
    O = X
    for i in range(8):
        a(f"v_exp_f32 v{S+i}, v{S+i}")
        if i < 4: a(f"ds_read_b64 {vr(VMr+2*i,2)}, v{V_VR} offset:{i*256}")
        if i >= 3 and i % 2 == 1: a(f"v_cvt_pk_bf16_f32 v{P+(i-3)//2}, v{S+i-3}, v{S+i-2}")
    a(f"v_exp_f32 v{S+8}, v{S+8}")
    a(f"v_cvt_pk_bf16_f32 v{P+3}, v{S+6}, v{S+7}")
    a(f"v_exp_f32 v{S+9}, v{S+9}")
    a(f"v_exp_f32 v{S+10}, v{S+10}")
    stamp(6)
    seq = [[f"v_exp_f32 v{S+11}, v{S+11}"], [f"v_cvt_pk_bf16_f32 v{P+4}, v{S+8}, v{S+9}", f"v_cvt_pk_bf16_f32 v{P+5}, v{S+10}, v{S+11}"],
           [rdfrag(6), rdfrag(7)], [], [rdfrag(8)], [rdfrag(9)], [rdfrag(10)], [rdfrag(11)]]
    for t in range(8):
        if t < 4: a(f"v_mfma_f32_16x16x32_bf16 {vr(O+4*t,4)}, {vr(VX+4*t,4)}, {vr(P,4)}, 0")
        else:
            if t == 4: a("s_waitcnt lgkmcnt(2)")
            a(f"v_mfma_f32_16x16x16_bf16 {vr(O+4*(t-4),4)}, {vr(VMr+2*(t-4),2)}, {vr(P+4,2)}, {vr(O+4*(t-4),4)}")
        for op in seq[t]: a(op)
    LS = ACC; B1 = ACC+4; B2 = ACC+12
    cv = [f"v_cvt_pk_bf16_f32 v{B1+i}, v{O+2*i}, v{O+2*i+1}" for i in range(8)]
    for j in range(3):
        a(f"v_mfma_f32_16x16x16_bf16 {vr(LS,4)}, {vr(ACC+18,2)}, {vr(P+2*j,2)}, {'0' if j==0 else vr(LS,4)}")
        a(cv[2*j]); a(cv[2*j+1])
    a(cv[6]); a(cv[7])
    stamp(7)
    OUT = [ACC, KX+24, KX+28]
    def acc(i): return X + 4*(i & 3)
    def fin(i):
        o = OUT[i >> 1] + 2*(i & 1); c = acc(i)
        return [f"v_mul_f32 v{c+r}, v{T}, v{c+r}" for r in range(4)] + [f"v_cvt_pk_bf16_f32 v{o}, v{c}, v{c+1}", f"v_cvt_pk_bf16_f32 v{o+1}, v{c+2}, v{c+3}"]
    fill = {j: [] for j in range(21)}
    order = [(0,0,0),(1,0,0),(0,0,1),(1,0,1),(0,1,0),(0,1,1),(1,1,0),(1,1,1)]
    for i in range(2,5): order += [(i,0,0),(i,0,1),(i,1,0),(i,1,1)]
    dpp = [f"v_mov_b32_dpp v{B2+x}, v{B1+x} row_shr:8 row_mask:0xf bank_mask:0xf bound_ctrl:0" for x in range(8)]
    fill[0] += dpp[0:2]; fill[1] += dpp[2:4]; fill[2] += dpp[4:6]; fill[3] += dpp[6:8]
    fill[4] += [f"v_rcp_f32 v{T}, v{LS}", rdfrag(12)]
    fill[5] += [rdfrag(13), rdfrag(14), rdfrag(15)]
    fill[6] += [f"v_mov_b32_dpp v{T}, v{T} row_shr:8 row_mask:0xf bank_mask:0xf", rdfrag(16), rdfrag(17)]
    fill[7] += [rdfrag(18), rdfrag(19)]
    st = {1: f"buffer_store_dwordx4 {vr(OUT[0],4)}, v{V_PS4}, s[4:7], s35 offen sc1",
          3: f"buffer_store_dwordx4 {vr(OUT[1],4)}, v{V_PS4}, s[4:7], s38 offen sc1",
          4: f"buffer_store_dwordx2 {vr(OUT[2],2)}, v{V_PS2}, s[4:7], s35 offen sc1"}
    start = {0: 8, 1: 11, 2: 14, 3: 17, 4: 20}
    for i in range(5):
        ops = fin(i) + ([st[i]] if i in st else [])
        for x, op in enumerate(ops): fill[min(20, start[i] + x//2)].append(op)
    a(f"s_add_u32 s38, s35, {8*16384}")
    outstanding = [6,7,8,9,10,11]
    for j,(i,hb,ks) in enumerate(order):
        f = (i*2+hb)*2+ks
        if f in outstanding:
            idx = outstanding.index(f)
            a(f"s_waitcnt lgkmcnt({min(15,len(outstanding)-1-idx)})")
            outstanding = outstanding[idx+1:]
        first = (hb == 0 and ks == 0)
        a(f"v_mfma_f32_16x16x32_bf16 {vr(acc(i),4)}, {vr(frag(f),4)}, {vr((B2 if hb else B1)+4*ks,4)}, {'0' if first else vr(acc(i),4)}")
        for op in fill[j]:
            a(op)
            if op.startswith('ds_read'): outstanding.append((int(op.split('offset:')[1]) - L_WO)//1024)
    for op in fill[20]: a(op)
    stamp(8)
    a("s_cmp_lt_i32 s32, 0\ns_cbranch_scc1 L_rec_notR")
    a("s_memrealtime s[100:101]")
    a("s_waitcnt vmcnt(3)")
    stamp('T0')
    a(f"""
    L_rec_ts:
    v_cmp_gt_i32 vcc, 0, v{U}
    v_subrev_u32 v{U}, s98, v{U}
    s_cbranch_vccnz L_rec_failT
    v_lshlrev_b32 v{U}, 1, v{U}
    v_max_i32_dpp v{U}, v{U}, v{U} row_ror:1 row_mask:0xf bank_mask:0xf
    v_max_i32_dpp v{U}, v{U}, v{U} row_ror:2 row_mask:0xf bank_mask:0xf
    v_max_i32_dpp v{U}, v{U}, v{U} row_ror:4 row_mask:0xf bank_mask:0xf
    v_max_i32_dpp v{U}, v{U}, v{U} row_ror:8 row_mask:0xf bank_mask:0xf
    v_readlane_b32 s38, v{U}, 0
    v_readlane_b32 s39, v{U}, 16
    v_readlane_b32 s51, v{U}, 32
    v_readlane_b32 s65, v{U}, 48
    v_add_u32 v{V_T1}, 4096, v{V_RL0}
    s_max_i32 s38, s38, s39
    s_max_i32 s51, s51, s65
    s_max_i32 s38, s38, s51
    s_add_i32 s38, s38, s41
    s_max_i32 s38, s38, 0
    s_min_i32 s38, s38, 4000
    s_mul_i32 s38, s38, 14
    s_lshr_b32 s38, s38, 5
    """)
    stamp('T1')
    delay('s38')
    stamp('B0')
    def rload():
        for i in range(8): a(f"buffer_load_dwordx4 {vr(M+4*i,4)}, v{V_RL0 if i<4 else V_T1}, s[4:7], s35 offen offset:{(i&3)*1024} sc1")
    rload()
    a("s_barrier")
    prep('s58')
    a("L_rec_waitB:")
    RA = M+32
    for i in range(8):
        a(f"s_waitcnt vmcnt({7-i})")
        if i == 0: stamp('B1')
        if i == 7: stamp('B2')
        a(f"v_mfma_f32_16x16x32_bf16 {vr(RA,4)}, {vr(V_SEL,4)}, {vr(M+4*i,4)}, {'0' if i==0 else vr(RA,4)}")
        if i == 0: a(f"v_max3_u32 v{V_T0}, v{M}, v{M+1}, v{M+2}")
        else:
            a(f"v_max3_u32 v{V_T0}, v{V_T0}, v{M+4*i-1}, v{M+4*i}")
            a(f"v_max3_u32 v{V_T0}, v{V_T0}, v{M+4*i+1}, v{M+4*i+2}")
    a(f"v_max_u32 v{V_T0}, v{V_T0}, v{M+31}")
    a(f"v_cmp_eq_u32 vcc, s97, v{V_T0}")
    a("s_cbranch_vccnz L_rec_failB")
    for r in range(4): a(f"v_add_f32_dpp v{RA+r}, v{RA+r}, v{RA+r} row_ror:8 row_mask:0xf bank_mask:0xf")
    a(f"""
    v_cvt_pk_bf16_f32 v{RA}, v{RA}, v{RA+1}
    v_cvt_pk_bf16_f32 v{RA+1}, v{RA+2}, v{RA+3}
    buffer_store_dwordx2 {vr(RA,2)}, v{V_PUB}, s[4:7], s34 offen sc1
    s_branch L_rec_next
    L_rec_notR:
    """)
    a("s_cmp_lg_u32 s29, 3\ns_cbranch_scc1 L_rec_n3")
    kmv_pub()
    kmv_st()
    flag_pub('s33')
    a("L_rec_n3:")
    prep('s58')
    a(f"""
    s_barrier
    L_rec_next:
    s_add_u32 s33, s33, 1
    s_add_u32 s34, s34, {MEM_STEP}
    s_add_u32 s36, s36, {32*16384*xkv}
    s_add_u32 s57, s57, {32*4096*xkmv}
    s_mov_b32 s38, s35
    s_mov_b32 s35, s62
    s_mov_b32 s62, s63
    s_mov_b32 s63, s64
    s_mov_b32 s64, s38
    s_mov_b32 s38, s37
    s_mov_b32 s37, s58
    s_mov_b32 s58, s52
    s_mov_b32 s52, s38
    """)
    stamp(9)
    stamp_end()
    a(f"""
    s_branch L_rec_step
    """)
    PA = M
    a(f"""
    L_rec_failA:
    s_barrier
    v_add_u32 v{M+32}, s53, v{V_T1}
    v_mov_b32 v{PA+8}, 0
    v_mov_b32 v{PA+9}, 0
    v_mov_b32 v{PA+10}, 0
    v_mov_b32 v{PA+11}, 0
    """)
    for i in range(16): a(f"v_mov_b32 v{ACC+i}, 0")
    for i in range(4): a(f"v_mov_b32 v{vv+i}, s97")
    a(f"""
    L_rec_pollA:
    s_add_u32 s42, s42, 1
    s_bitcmp1_b32 s42, 15
    s_cbranch_scc1 L_rec_done
    buffer_load_dwordx4 {vr(PA,4)}, v{V_MEMG}, s[4:7], s51 offen sc1
    buffer_load_dwordx4 {vr(PA+4,4)}, v{V_MEMG}, s[4:7], s65 offen sc1
    s_cmp_ge_u32 s29, 2
    s_cbranch_scc1 L_rec_pa2
    buffer_load_dwordx4 {vr(PA+8,4)}, v{V_MEMG}, s[4:7], s39 offen sc1
    L_rec_pa2:
    s_waitcnt vmcnt(0)
    v_max3_u32 v{V_T0}, v{PA}, v{PA+1}, v{PA+2}
    v_max3_u32 v{M+33}, v{PA+3}, v{PA+4}, v{PA+5}
    v_max3_u32 v{V_T0}, v{V_T0}, v{PA+6}, v{PA+7}
    v_max3_u32 v{M+33}, v{M+33}, v{PA+8}, v{PA+9}
    v_max3_u32 v{V_T0}, v{V_T0}, v{PA+10}, v{PA+11}
    v_max_u32 v{V_T0}, v{V_T0}, v{M+33}
    v_cmp_eq_u32 vcc, s97, v{V_T0}
    s_cbranch_vccnz L_rec_pollA
    ds_write_b128 v{M+32}, {vr(PA,4)}
    ds_write_b128 v{M+32}, {vr(PA+4,4)} offset:4096
    ds_write_b128 v{M+32}, {vr(PA+8,4)} offset:8192
    s_waitcnt lgkmcnt(0)
    s_branch L_rec_go
    L_rec_kvslow:
    s_load_dword s8, s[4:5], s9 glc
    s_waitcnt lgkmcnt(0)
    s_cmp_ge_u32 s8, s11
    s_cbranch_scc1 L_rec_kvgo
    s_sleep 2
    s_add_u32 s10, s10, 1
    s_cmp_lt_u32 s10, 0x40000
    s_cbranch_scc1 L_rec_kvslow
    s_branch L_rec_done
    L_rec_failT:
    s_add_u32 s42, s42, 0x10000
    s_cmp_ge_u32 s42, 0x80000000
    s_cbranch_scc1 L_rec_done
    v_lshlrev_b32 v{U}, 3, v{V_L16}
    buffer_load_dword v{U}, v{U}, s[4:7], s50 offen sc1
    s_waitcnt vmcnt(0) lgkmcnt(0)
    s_sub_u32 s98, s98, s100
    s_memrealtime s[100:101]
    s_waitcnt lgkmcnt(0)
    s_add_u32 s98, s98, s100
    s_branch L_rec_ts
    L_rec_failB:
    s_add_u32 s96, s96, 1
    s_bitcmp1_b32 s96, 17
    s_cbranch_scc1 L_rec_done
    """)
    rload()
    a(f"""
    s_branch L_rec_waitB
    L_rec_last:
    s_waitcnt lgkmcnt(0)
    s_barrier
    s_cmp_lg_u32 s29, 3
    s_cbranch_scc1 L_rec_done
    """)
    kmv_pub()
    kmv_st()
    a("s_waitcnt vmcnt(0)")
    flag_pub(64)
    a("""
    L_rec_done:
    s_waitcnt vmcnt(0)
    """)
```

```python
import re

_REG = re.compile(r'\b([vas])(\d+)\b|\b([vas])\[(\d+):(\d+)\]|\b(vcc|exec|m0|scc)\b|\b(vcc_lo|vcc_hi|exec_lo|exec_hi)\b')
TRANS = ('v_exp_', 'v_log_', 'v_rcp_', 'v_rsq_', 'v_sqrt_', 'v_sin_', 'v_cos_')

def regs_of(tok):
    out = []
    for m in _REG.finditer(tok):
        if m.group(1): out.append((m.group(1), int(m.group(2))))
        elif m.group(3): out += [(m.group(3), i) for i in range(int(m.group(4)), int(m.group(5)) + 1)]
        elif m.group(6): out.append((m.group(6), 0))
        elif m.group(7): out.append((m.group(7)[:-3], 0))
    return out

def split_ops(s):
    ops, cur, depth = [], '', 0
    for ch in s:
        if ch in '[(': depth += 1
        if ch in '])': depth -= 1
        if ch == ',' and depth == 0:
            ops.append(cur.strip()); cur = ''
        else: cur += ch
    if cur.strip(): ops.append(cur.strip())
    return ops

class Ins:
    __slots__ = ('text', 'mn', 'kind', 'w', 'r', 'A', 'B', 'C', 'D', 'passes', 'ws', 'trans', 'dpp', 'perm', 'target', 'wide_store', 'ldsdma', 'rl')
    def __init__(self, text):
        self.text = text
        t = text.split(';')[0].strip()
        parts = t.split(None, 1)
        mn = self.mn = parts[0]
        rest = parts[1] if len(parts) > 1 else ''
        ops = split_ops(rest)
        self.w = set(); self.r = set(); self.A = self.B = self.C = self.D = frozenset()
        self.passes = 0; self.ws = 1; self.trans = False; self.dpp = False; self.perm = False
        self.target = None; self.wide_store = frozenset(); self.ldsdma = False; self.rl = False
        R = [set(regs_of(o)) for o in ops]
        allr = set().union(*R) if R else set()
        if mn.startswith('v_mfma') or mn.startswith('v_smfmac'):
            self.kind = 'mfma'
            self.passes = 8 if '32x32' in mn else 4
            self.D = frozenset(R[0]); self.A = frozenset(R[1]); self.B = frozenset(R[2])
            if mn.startswith('v_smfmac'):
                self.C = self.D; self.B = frozenset(R[2] | R[3])
            else:
                self.C = frozenset(R[3])
            self.w = set(self.D); self.r = set(self.A | self.B | self.C)
        elif mn.startswith('v_'):
            self.kind = 'valu'
            self.trans = mn.startswith(TRANS)
            self.dpp = ('row_' in rest) or ('quad_perm' in rest) or ('wave_' in rest) or mn.endswith('_dpp')
            if 'permlane' in mn:
                self.perm = True; self.w = R[0] | R[1]; self.r = R[0] | R[1]
            elif mn.startswith('v_cmp'):
                self.w = set(R[0]); self.r = set().union(*R[1:])
                if mn.startswith('v_cmpx'): self.w.add(('exec', 0))
            elif mn.startswith(('v_add_co', 'v_sub_co', 'v_addc_co', 'v_subb_co', 'v_subrev_co', 'v_div_scale', 'v_mad_u64', 'v_mad_i64')):
                self.w = R[0] | R[1]; self.r = set().union(*R[2:])
            elif mn == 'v_nop':
                pass
            else:
                self.w = set(R[0]); self.r = set().union(*R[1:]) if len(R) > 1 else set()
                if mn.startswith(('v_fmac', 'v_dot2c', 'v_pk_fmac', 'v_writelane')) or self.dpp: self.r |= R[0]
                if mn.startswith(('v_readlane', 'v_readfirstlane')): self.rl = True
                if mn.startswith('v_cndmask') and len(ops) == 3: self.r.add(('vcc', 0))
        elif mn.startswith(('buffer_', 'global_', 'flat_')):
            self.kind = 'vmem'
            lds = re.search(r'\blds\b', rest) is not None or '_lds_' in mn
            if lds:
                self.ldsdma = True; self.r = allr | {('m0', 0)}
            elif '_load' in mn:
                self.w = set(R[0]); self.r = set().union(*R[1:])
            elif 'atomic' in mn:
                self.r = allr
                if re.search(r'\bsc0\b', rest): self.w = set(R[0])
            else:
                self.r = allr
                if 'x4' in mn or 'x3' in mn:
                    self.wide_store = frozenset(R[0] if mn.startswith('buffer') else R[1])
        elif mn.startswith('ds_'):
            self.kind = 'ds'
            if mn.startswith(('ds_read', 'ds_bpermute', 'ds_permute', 'ds_swizzle')) or '_rtn' in mn:
                self.w = set(R[0]); self.r = set().union(*R[1:])
            else: self.r = allr
        elif mn.startswith('s_'):
            self.kind = 'salu'
            if mn == 's_nop': self.ws = int(ops[0], 0) + 1
            elif mn.startswith(('s_cbranch', 's_branch')): self.target = ops[0]
            elif mn.startswith(('s_cmp', 's_waitcnt', 's_barrier', 's_endpgm', 's_sleep', 's_setprio', 's_bitcmp')): self.r = allr
            else:
                self.w = set(R[0]) if R else set(); self.r = set().union(*R[1:]) if len(R) > 1 else set()
                if 'saveexec' in mn: self.w.add(('exec', 0))
        else:
            raise ValueError('unknown instr ' + text)

def vec(s): return {x for x in s if x[0] in 'va'}
def sca(s): return {x for x in s if x[0] in ('s', 'vcc')}

def need(P, C):
    n = 0
    if P.kind == 'valu':
        pw = vec(P.w)
        if pw:
            if C.kind == 'mfma' and pw & C.r: n = max(n, 2)
            if C.kind == 'valu':
                if (C.perm or C.dpp) and pw & C.r: n = max(n, 2)
                if C.rl and pw & C.r: n = max(n, 1)
                if P.trans and not C.trans and pw & C.r: n = max(n, 1)
        ps = sca(P.w)
        if ps:
            if C.kind == 'valu' and ps & C.r: n = max(n, 4 if C.mn.startswith(('v_readlane', 'v_writelane')) else 2)
            if C.kind == 'mfma' and ps & C.r: n = max(n, 2)
            if C.kind == 'vmem' and ps & C.r: n = max(n, 5)
        if ('exec', 0) in P.w:
            if C.kind == 'mfma': n = max(n, 4)
            if C.kind == 'valu' and C.dpp: n = max(n, 5)
            if C.kind == 'valu' and (C.perm or C.rl): n = max(n, 4)
    elif P.kind == 'mfma':
        p = P.passes
        if C.kind == 'mfma':
            if P.D & (C.A | C.B): n = max(n, p + 4)
            if P.D & C.C:
                if not (P.D == C.C and P.mn == C.mn): n = max(n, p + 2)
            elif P.D & C.D: n = max(n, p + 2)
        elif C.kind == 'valu':
            if P.D & (C.r | C.w): n = max(n, p + 4)
            if P.C & C.w: n = max(n, p - 1)
        elif C.kind in ('vmem', 'ds'):
            if P.D & (C.r | C.w): n = max(n, p + 4)
    elif P.kind == 'salu':
        if ('m0', 0) in P.w and C.ldsdma: n = max(n, 1)
    elif P.kind == 'vmem':
        if P.wide_store:
            if C.kind == 'valu' and P.wide_store & C.w: n = max(n, 2)
            elif P.wide_store & C.w: n = max(n, 1)
    return n

class Asm:
    def __init__(self):
        self.items = []
        self._u = 0
    def __call__(self, text):
        for line in text.split('\n'):
            line = line.strip()
            if not line or line.startswith(';'): continue
            if line.endswith(':'): self.items.append(('label', line[:-1]))
            elif line.startswith('.'): self.items.append(('raw', line))
            else: self.items.append(Ins(line))
    def label(self, name): self.items.append(('label', name))
    def uniq(self, p='L'):
        self._u += 1; return f'{p}_{self._u}'
    def finish(self):
        items = self.items
        labels = {it[1]: i for i, it in enumerate(items) if isinstance(it, tuple) and it[0] == 'label'}
        jumps = {}
        for i, it in enumerate(items):
            if isinstance(it, Ins) and it.target is not None:
                jumps.setdefault(labels[it.target], []).append(i)
        extra = [0] * len(items)
        MAXD = 12
        def preds(i):
            out = []
            if i > 0:
                p = items[i - 1]
                if not (isinstance(p, Ins) and p.mn in ('s_branch', 's_endpgm', 's_setpc_b64')): out.append(i - 1)
            out += jumps.get(i, [])
            return out
        for i, C in enumerate(items):
            if not isinstance(C, Ins) or C.kind == 'salu': continue
            deficit = 0
            stack = [(p, 0) for p in preds(i)]
            seen = {}
            while stack:
                j, d = stack.pop()
                if seen.get(j, 99) <= d: continue
                seen[j] = d
                P = items[j]
                nd = d
                if isinstance(P, Ins):
                    k = need(P, C)
                    if k > d: deficit = max(deficit, k - d)
                    nd = d + P.ws + extra[j]
                if nd < MAXD:
                    stack += [(p, nd) for p in preds(j)]
            extra[i] = deficit
        out = []
        nn = 0
        for i, it in enumerate(items):
            if extra[i]:
                out.append(f'  s_nop {extra[i] - 1}'); nn += 1
            if isinstance(it, Ins): out.append('  ' + it.text)
            elif it[0] == 'label': out.append(it[1] + ':')
            else: out.append(it[1])
        self.nops = nn
        return '\n'.join(out)

def vr(b, n=1, p='v'):
    return f'{p}{b}' if n == 1 else f'{p}[{b}:{b + n - 1}]'
```

```python
import sys; sys.path.insert(0,'tools'); sys.path.insert(0,'gen')
from gasm import *
from layout import *
import rec, g1, att, g3

NAME = "gated_mix__memory_aug_recurrent_mem_tr__glu_gated_swiglu__prompt"

def kwrap(name, body, vgpr, accum, sgpr=102):
    return f""".text
.globl {name}
.p2align 8
.type {name},@function
{name}:
{body}
  s_endpgm
.section .rodata,"a"
.p2align 6
.amdhsa_kernel {name}
  .amdhsa_next_free_vgpr {vgpr}
  .amdhsa_next_free_sgpr {sgpr}
  .amdhsa_accum_offset {accum}
  .amdhsa_group_segment_fixed_size 0
  .amdhsa_kernarg_size 120
  .amdhsa_user_sgpr_count 2
  .amdhsa_user_sgpr_kernarg_segment_ptr 1
  .amdhsa_system_sgpr_workgroup_id_x 1
.end_amdhsa_kernel
"""

def gen_init():
    a = Asm()
    a(f"""
    s_cmp_ge_u32 s2, 256
    s_cbranch_scc1 L_i_end
    s_load_dwordx2 s[4:5], s[0:1], 112
    s_load_dwordx2 s[8:9], s[0:1], 0
    s_load_dwordx2 s[12:13], s[0:1], 88
    s_mov_b32 s6, 0x10000000
    s_mov_b32 s7, 0x20000
    s_mov_b32 s10, 2621440
    s_mov_b32 s11, 0x20000
    s_mov_b32 s14, 1280
    s_mov_b32 s15, 0x20000
    v_lshrrev_b32 v1, 6, v0
    v_readfirstlane_b32 s20, v1
    v_lshlrev_b32 v2, 4, v0
    s_waitcnt lgkmcnt(0)
    s_cmp_ge_u32 s2, 8
    s_cbranch_scc1 L_i_gate
    s_cmp_lg_u32 s20, 0
    s_cbranch_scc1 L_i_gate
    s_lshl_b32 s21, s2, 21
    s_add_u32 s21, s21, {0x1F0000+6144}
    s_add_u32 s22, s21, 8192
    s_mov_b32 s24, -1
    s_mov_b32 s25, -1
    v_mov_b32 v3, 0
    """)
    for it in range(6):
        for k,(so,sm) in enumerate((('s21','s24'),('s22','s25'))):
            a(f"""
            buffer_store_dword v3, off, s[4:7], {so} sc1
            s_waitcnt vmcnt(0)
            s_memtime s[26:27]
            s_waitcnt lgkmcnt(0)
            buffer_load_dword v4, off, s[4:7], {so} sc1
            s_waitcnt vmcnt(0)
            s_memtime s[28:29]
            s_waitcnt lgkmcnt(0)
            s_sub_u32 s26, s28, s26
            s_min_u32 {sm}, {sm}, s26
            """)
    a(f"""
    s_cmp_lt_u32 s25, s24
    s_cselect_b32 s26, 8192, 0
    s_getreg_b32 s27, hwreg(HW_REG_XCC_ID)
    s_and_b32 s27, s27, 4
    s_lshl_b32 s27, s27, 11
    s_xor_b32 s26, s26, s27
    v_mov_b32 v3, s26
    s_lshl_b32 s21, s2, 2
    s_add_u32 s21, s21, {POL_BASE}
    buffer_store_dword v3, off, s[4:7], s21
    L_i_gate:
    v_lshrrev_b32 v5, 5, v0
    s_lshl_b32 s21, s2, 3
    v_add_u32 v5, s21, v5
    v_and_b32 v6, 31, v0
    v_lshlrev_b32 v6, 2, v6
    v_mul_u32_u24 v7, 1280, v5
    v_add_u32 v7, v7, v6
    """)
    for i in range(10):
        a(f"buffer_load_dword v{10+i}, v7, s[8:11], 0 offen offset:{128*i}")
        a(f"buffer_load_dword v{20+i}, v6, s[12:15], 0 offen offset:{128*i}")
    a(f"s_mov_b32 s22, {SENT}")
    for i in range(4): a(f"v_mov_b32 v{32+i}, s22\nv_mov_b32 v{36+i}, 0")
    a("s_lshl_b32 s21, s2, 16")
    for i in range(16):
        a(f"buffer_store_dwordx4 v[32:35], v2, s[4:7], s21 offen\ns_add_u32 s21, s21, 4096")
    a(f"""
    s_cmp_lt_u32 s2, 248
    s_cbranch_scc1 L_i_nf
    s_sub_u32 s21, s2, 248
    s_lshl_b32 s21, s21, 12
    s_add_u32 s21, s21, {FLAG_BASE}
    buffer_store_dwordx4 v[36:39], v2, s[4:7], s21 offen
    L_i_nf:
    v_mov_b32 v8, 0
    s_waitcnt vmcnt(16)
    """)
    for i in range(10):
        a(f"v_lshlrev_b32 v30, 16, v{10+i}\nv_lshlrev_b32 v31, 16, v{20+i}\nv_fmac_f32 v8, v30, v31")
        a(f"v_and_b32 v30, 0xffff0000, v{10+i}\nv_and_b32 v31, 0xffff0000, v{20+i}\nv_fmac_f32 v8, v30, v31")
    for sh in (1,2,4,8): a(f"v_add_f32_dpp v8, v8, v8 row_ror:{sh} row_mask:0xf bank_mask:0xf")
    a(f"""
    v_mov_b32 v9, v8
    v_permlane16_swap_b32 v8, v9
    v_add_f32 v8, v8, v9
    v_mul_f32 v8, 0xbfb8aa3b, v8
    v_exp_f32 v8, v8
    v_add_f32 v8, 1.0, v8
    v_rcp_f32 v8, v8
    v_lshlrev_b32 v5, 2, v5
    s_mov_b32 s21, {G_BASE}
    buffer_store_dword v8, v5, s[4:7], s21 offen
    L_i_end:
    """)
    return a.finish()

def gen_main(dA=40, dB=20, dbg=None, params=False, roles=('rec','g1','att','g3')):
    a = Asm()
    a(f"""
    s_cmp_ge_u32 s2, 256
    s_cbranch_scc1 L_end
    s_load_dwordx2 s[4:5], s[0:1], 112
    s_mov_b32 s6, 0x10000000
    s_mov_b32 s7, 0x20000
    s_and_b32 s38, s2, 7
    s_lshr_b32 s39, s2, 3
    s_waitcnt lgkmcnt(0)
    s_cmp_ge_u32 s38, 4
    s_cbranch_scc1 L_m_hi
    s_cmp_lt_u32 s39, 16
    s_cbranch_scc1 L_m_rec
    s_cmp_ge_u32 s39, 20
    s_cbranch_scc1 L_end
    s_sub_u32 s30, s39, 16
    s_lshl_b32 s30, s30, 2
    s_add_u32 s30, s30, s38
    s_branch {'L_att' if 'att' in roles else 'L_end'}
    L_m_hi:
    s_mov_b32 s28, 0
    s_mov_b32 s30, s39
    s_cmp_eq_u32 s38, 7
    s_cbranch_scc1 {'L_g1' if 'g1' in roles else 'L_end'}
    s_sub_u32 s28, s38, 4
    s_cmp_lt_u32 s39, 20
    s_cbranch_scc1 {'L_g3' if 'g3' in roles else 'L_end'}
    s_mul_i32 s30, s28, 12
    s_add_u32 s30, s30, s39
    s_sub_u32 s30, s30, 20
    s_mov_b32 s28, 1
    s_cmp_lt_u32 s30, 16
    s_cbranch_scc1 {'L_g1' if 'g1' in roles else 'L_end'}
    s_sub_u32 s30, s30, 16
    s_mov_b32 s28, 2
    s_cmp_lt_u32 s30, 14
    s_cbranch_scc1 {'L_g1' if 'g1' in roles else 'L_end'}
    s_branch L_end
    L_m_rec:
    """)
    if 'rec' not in roles: a("s_branch L_end")
    else:
        a(f"""
        s_lshl_b32 s28, s39, 2
        s_add_u32 s28, s28, s38
        s_mov_b32 s38, {POL_BASE}
        s_load_dwordx8 s[44:51], s[4:5], s38
        s_mov_b32 s40, {dA}
        s_mov_b32 s41, {dB}
        """)
        if params: a("s_load_dwordx2 s[82:83], s[0:1], 56\ns_waitcnt lgkmcnt(0)\ns_load_dwordx2 s[40:41], s[82:83], 0")
        if dbg is not None: a("s_memtime s[2:3]")
        a("""
        s_waitcnt lgkmcnt(0)
        s_and_b32 s65, s51, 8192
        s_and_b32 s52, s50, 8192
        s_and_b32 s51, s49, 8192
        s_and_b32 s50, s48, 8192
        s_and_b32 s49, s47, 8192
        s_and_b32 s48, s46, 8192
        s_and_b32 s47, s45, 8192
        s_and_b32 s46, s44, 8192
        """)
        rec.gen_rec(a, dbg=dbg)
        if dbg is not None:
            a("s_memtime s[100:101]\ns_waitcnt lgkmcnt(0)\ns_sub_u32 s100, s100, s2")
            if dbg: a("s_sub_u32 s101, s61, s2")
            a(f"s_lshl_b32 s38, s28, 2\ns_add_u32 s38, s38, s29\ns_lshl_b32 s38, s38, 6\ns_add_u32 s38, s38, {FLAG_BASE+131072}\nv_mov_b32 v20, s38")
            vals = ['s100','s101','s42','s96'] + ([f's{86+i}' for i in range(10)]+['s10','s10'] if dbg else [])
            for i,v in enumerate(vals): a(f"v_mov_b32 v{24+i}, {v}")
            for i in range(len(vals)//4): a(f"buffer_store_dwordx4 v[{24+4*i}:{27+4*i}], v20, s[4:7], 0 offen offset:{16*i}")
        a("s_branch L_end")
    if 'g1' in roles: g1.gen_g1(a)
    if 'att' in roles: att.gen_att(a)
    if 'g3' in roles: g3.gen_g3(a)
    a("L_end:")
    return a.finish()

def build_all(**kw):
    ref = open(f'cdna_kernels/{NAME}.s.ref').read().split('\n')
    hdr = [l for l in ref if l.startswith(';') and '@launch' not in l and 'Override' not in l and 'grid=ceil' not in l]
    out = '\n'.join(hdr) + '\n'
    out += f"; @launch kernel=init_kernel grid=(256,1,1) block=(256,1,1) lds=0\n"
    out += f"; @launch kernel={NAME}_kernel grid=(256,1,1) block=(256,1,1) lds=163840\n"
    out += '.amdgcn_target "amdgcn-amd-amdhsa--gfx950"\n'
    out += kwrap('init_kernel', gen_init(), 64, 64, 40)
    out += kwrap(f'{NAME}_kernel', gen_main(**kw), 512, 256)
    return out

if __name__ == '__main__':
    s = build_all()
    open(f'cdna_kernels/{NAME}.s', 'w').write(s)
    print(len(s), s.count('\n'))
```

```python
import sys; sys.path.insert(0,'tools'); sys.path.insert(0,'gen')
from gasm import *
from layout import *
from rec2 import wait_init

def W(i, ks):
    idx = (ks*4 + i)*4
    return ('a', idx) if idx < 256 else ('v', 192 + idx - 256)
def wr(i, ks, n=4, off=0):
    p, b = W(i, ks); return vr(b+off, n, p)

def gen_g1(a):
    ACC = 32; XF = 64
    def acc(i, tt): return ACC + (i*2+tt)*4
    a(f"""
    L_g1:
    v_lshrrev_b32 v1, 6, v0
    v_readfirstlane_b32 s29, v1
    v_and_b32 v2, 63, v0
    v_lshlrev_b32 v3, 4, v2               ; lane*16
    s_load_dwordx2 s[16:17], s[0:1], 0     ; x
    s_mov_b32 s18, 2621440
    s_mov_b32 s19, 0x20000
    s_mov_b32 s11, 0x20000
    s_mov_b32 s15, 0x20000
    s_cmp_eq_u32 s28, 1
    s_cbranch_scc1 L_g1_tq
    s_cmp_eq_u32 s28, 2
    s_cbranch_scc1 L_g1_tf
    s_load_dwordx2 s[8:9], s[0:1], 24
    s_load_dwordx2 s[12:13], s[0:1], 32
    s_mov_b32 s10, 5242880
    s_mov_b32 s14, 5242880
    s_mov_b32 s31, 8192
    s_lshl_b32 s32, s30, 8
    s_mov_b32 s33, s32
    s_lshl_b32 s34, s30, 14
    s_add_u32 s34, s34, {KV_BASE}
    s_mov_b32 s35, {32*16384}
    s_add_u32 s36, s30, {F_KV}
    s_branch L_g1_t
    L_g1_tq:
    s_load_dwordx2 s[8:9], s[0:1], 16
    s_load_dwordx2 s[12:13], s[0:1], 16
    s_mov_b32 s10, 5242880
    s_mov_b32 s14, 5242880
    s_mov_b32 s31, 8192
    s_lshl_b32 s32, s30, 9
    s_add_u32 s33, s32, 256
    s_lshl_b32 s34, s30, 14
    s_add_u32 s34, s34, {Q_BASE}
    s_mov_b32 s35, {32*8192}
    s_add_u32 s36, s30, {F_Q}
    s_branch L_g1_t
    L_g1_tf:
    s_load_dwordx2 s[8:9], s[0:1], 64
    s_load_dwordx2 s[12:13], s[0:1], 72
    s_mov_b32 s10, 2211840
    s_mov_b32 s14, 2211840
    s_mov_b32 s31, 3456
    s_lshl_b32 s32, s30, 8
    s_mov_b32 s33, s32
    s_lshl_b32 s34, s30, 13
    s_add_u32 s34, s34, {H_BASE}
    s_mov_b32 s35, {54*2048}
    s_add_u32 s36, s30, {F_F}
    L_g1_t:
    s_lshl_b32 s36, s36, 7
    s_add_u32 s36, s36, {FLAG_BASE}
    s_mov_b32 s37, 0
    s_cmp_eq_u32 s28, 2
    s_cselect_b32 s37, 2, s37
    s_lshr_b32 s38, s29, 1                 ; w>>1
    s_and_b32 s39, s29, 1                  ; w&1
    s_cmp_eq_u32 s28, 0
    s_cselect_b32 s37, s38, s37
    s_lshl_b32 s40, s30, 2
    s_add_u32 s40, s40, s29
    s_cmp_ge_u32 s40, 54
    s_cselect_b32 s40, 3, 2
    s_cmp_eq_u32 s28, 2
    s_cselect_b32 s37, s40, s37
    v_lshrrev_b32 v4, 4, v2
    v_lshlrev_b32 v5, 2, v4
    s_lshl_b32 s40, s38, 1
    v_or_b32 v5, s40, v5
    v_and_b32 v6, 15, v2
    v_xor_b32 v5, v5, v6
    v_lshlrev_b32 v5, 4, v5
    s_lshl_b32 s40, s29, 2
    v_add_u32 v4, s40, v4
    v_mul_lo_u32 v4, v4, s31
    v_add3_u32 v8, v4, v5, s32
    v_add3_u32 v9, v4, v5, s33
    s_lshl_b32 s41, s31, 4                 ; 16 rows
    s_lshl_b32 s45, s29, 10
    v_lshrrev_b32 v4, 4, v2                ; g
    v_bfe_u32 v5, v2, 2, 2                 ; r
    v_and_b32 v6, 3, v2                    ; c
    v_lshl_add_u32 v7, v4, 3, v5
    v_lshlrev_b32 v7, 8, v7                ; row*256
    v_and_b32 v10, 1, v4
    v_lshlrev_b32 v10, 1, v10
    v_lshl_or_b32 v10, v5, 2, v10          ; f
    s_cmp_eq_u32 s37, 1
    s_cbranch_scc1 L_g1_av
    s_cmp_ge_u32 s37, 2
    s_cbranch_scc1 L_g1_af
    s_lshl_b32 s40, s39, 3
    v_add_u32 v11, s40, v6
    v_xor_b32 v12, v11, v10
    v_lshl_add_u32 v12, v12, 4, v7
    v_add_u32 v11, 4, v11
    v_xor_b32 v14, v11, v10
    v_lshl_add_u32 v14, v14, 4, v7
    s_lshl_b32 s40, s38, 14
    v_add_u32 v12, s40, v12
    v_add_u32 v14, s40, v14
    v_add_u32 v13, 8, v12
    v_add_u32 v15, 8, v14
    s_branch L_g1_ad
    L_g1_af:
    s_lshl_b32 s40, s29, 2
    v_add_u32 v11, s40, v6
    v_xor_b32 v12, v11, v10
    v_lshl_add_u32 v12, v12, 4, v7
    v_add_u32 v13, 8, v12
    v_add_u32 v14, 16384, v12
    v_add_u32 v15, 16384, v13
    s_branch L_g1_ad
    L_g1_av:
    v_lshrrev_b32 v11, 1, v6
    s_lshl_b32 s40, s39, 3
    v_add_u32 v11, s40, v11
    v_and_b32 v16, 1, v6
    v_lshl_add_u32 v16, v16, 3, v7
    v_add_u32 v16, 16384, v16
    """)
    for i in range(4):
        a(f"v_add_u32 v17, {2*i}, v11\nv_xor_b32 v17, v17, v10\nv_lshl_add_u32 v{12+i}, v17, 4, v16")
    a("L_g1_ad:\ns_waitcnt lgkmcnt(0)")
    a("s_mov_b32 s51, s38\ns_cmp_eq_u32 s28, 0\ns_cbranch_scc1 L_g1a_wd")
    wait_init(a, 'g1a')
    a("s_mov_b32 s38, s51")
    NB = 5
    def issue(b):
        buf = (b % NB) * 32768
        for mi, (srd, v) in enumerate((('s[8:11]', 8), ('s[12:15]', 9))):
            for j in range(4):
                a(f"s_add_u32 m0, s45, {buf + mi*16384 + j*4096}")
                a(f"buffer_load_dwordx4 v{v}, {srd}, 0 offen lds")
                a(f"v_add_u32 v{v}, s41, v{v}")
    for b in range(NB-1): issue(b)
    for b in range(10):
        a(f"s_waitcnt vmcnt({8*(min(10, b+NB-1)-b-1)})\ns_barrier")
        if b + NB - 1 < 10: issue(b + NB - 1)
        buf = (b % NB) * 32768
        for i in range(4): a(f"v_add_u32 v{20+i}, {buf}, v{12+i}")
        for kk in range(2):
            for i in range(4):
                for hh in range(2):
                    a(f"ds_read_b64_tr_b16 {wr(i, 2*b+kk, 2, 2*hh)}, v{20+i} offset:{(32*kk+4*hh)*256}")
            a("s_waitcnt lgkmcnt(0)")
    a("s_barrier")
    a(f"""
    v_lshrrev_b32 v4, 3, v2
    v_and_b32 v5, 7, v2
    v_xor_b32 v5, v5, v4
    s_lshl_b32 s40, s29, 3
    v_add_u32 v4, s40, v4
    v_mul_u32_u24 v4, 1280, v4
    v_lshl_add_u32 v8, v5, 4, v4           ; x voffset
    v_and_b32 v4, 15, v2
    v_lshrrev_b32 v5, 4, v2
    v_and_b32 v6, 7, v2
    v_xor_b32 v5, v5, v6
    v_lshlrev_b32 v5, 4, v5
    v_lshl_add_u32 v9, v4, 7, v5
    s_mov_b32 s42, 0                       ; seg
    s_mov_b32 s43, 0
    s_mov_b32 s46, 0
    s_mov_b32 s47, 40960
    s_mov_b32 s48, 81920
    s_lshl_b32 s40, s38, 13
    s_lshl_b32 s44, s39, 11
    s_add_u32 s44, s44, s40                ; K/Q: (w>>1)*8K + (w&1)*2K
    s_lshl_b32 s40, s39, 12
    s_add_u32 s40, s40, 8192
    s_cmp_eq_u32 s37, 1
    s_cselect_b32 s44, s40, s44
    s_lshl_b32 s40, s29, 11
    s_cmp_ge_u32 s37, 2
    s_cselect_b32 s44, s40, s44
    s_add_u32 s34, s34, s44
    s_mov_b32 s49, 0xbfb8aa3b              ; -log2(e)
    """)
    def xhead(bufreg): a(f"s_add_u32 s52, {bufreg}, s45\ns_min_u32 s44, s43, {63*40960}\ns_add_u32 s43, s43, 40960")
    def x1(j): a(f"s_add_u32 m0, s52, {j*4096}\ns_add_u32 s53, s44, {j*128}\nbuffer_load_dwordx4 v8, s[16:19], s53 offen lds")
    for bsel in ('s46', 's47'):
        xhead(bsel)
        for j in range(10): x1(j)
    rstamp(a, 8)
    a("s_waitcnt vmcnt(10)")
    a("L_g1_loop:")
    a("s_barrier")
    xhead('s48')
    a(f"v_add_u32 v4, s46, v9\nv_xor_b32 v6, 64, v4")
    a("s_cmp_eq_u32 s37, 1\ns_cbranch_scc1 L_g1_mv")
    def xrd(ks):
        for tt in range(2): a(f"ds_read_b128 {vr(XF+((ks%4)*2+tt)*4,4)}, v{6 if ks&1 else 4} offset:{(ks>>1)*4096+tt*2048}")
    def mid():
        l = a.uniq('L_g1f')
        a(f"s_waitcnt vmcnt(0)\ns_barrier\ns_cmp_lg_u32 s29, 0\ns_cbranch_scc1 {l}")
        a(f"s_cmp_eq_u32 s42, 0\ns_cbranch_scc1 {l}\ns_cmp_lg_u32 s42, 1\ns_cbranch_scc1 L_{l}_wd")
        wait_init(a, l)
        a(f"v_mov_b32 v5, s42\nbuffer_store_dword v5, off, s[4:7], s36 sc1\n{l}:")
    def mloop(vtype):
        xrd(0); xrd(1); xrd(2)
        for ks in range(20):
            a(f"s_waitcnt lgkmcnt({min(4, 2*(19-ks))})")
            for i in range(4):
                for tt in range(2):
                    x = vr(XF+((ks%4)*2+tt)*4,4); w = wr(i,ks); d = vr(acc(i,tt),4)
                    A, B = (x, w) if vtype else (w, x)
                    a(f"v_mfma_f32_16x16x32_bf16 {d}, {A}, {B}, {'0' if ks==0 else d}")
                if i == 0 and ks + 3 < 20: xrd(ks+3)
                if i == 2 and ks >= 5 and ks < 15: x1(ks-5)
            if ks == 4: mid()
    mloop(False)
    a("s_cmp_ge_u32 s37, 2\ns_cbranch_scc1 L_g1_ef")
    O = 96
    for tt in range(2):
        for tp in range(2):
            o = O + (tt*2+tp)*4
            for t in range(2):
                c = acc(2*tp+t, tt)
                a(f"v_cvt_pk_bf16_f32 v{o+2*t}, v{c}, v{c+1}\nv_cvt_pk_bf16_f32 v{o+2*t+1}, v{c+2}, v{c+3}")
    a("s_add_u32 s40, s34, 4096")
    for tt in range(2):
        for tp in range(2):
            a(f"buffer_store_dwordx4 {vr(O+(tt*2+tp)*4,4)}, v3, s[4:7], {'s40' if tt else 's34'} offen offset:{tp*1024} sc1")
    a("s_branch L_g1_next")
    a("L_g1_ef:\ns_cmp_eq_u32 s37, 3\ns_cbranch_scc1 L_g1_idle")
    for tt in range(2):
        for t in range(2):
            g = acc(t, tt); u = acc(2+t, tt); T = O + 16
            for r in range(4): a(f"v_mul_f32 v{T+r}, s49, v{g+r}")
            for r in range(4): a(f"v_exp_f32 v{T+r}, v{T+r}")
            for r in range(4): a(f"v_mul_f32 v{u+r}, v{u+r}, v{g+r}")
            for r in range(4): a(f"v_add_f32 v{T+r}, 1.0, v{T+r}")
            for r in range(4): a(f"v_rcp_f32 v{T+r}, v{T+r}")
            for r in range(4): a(f"v_mul_f32 v{u+r}, v{u+r}, v{T+r}")
            o = O + tt*4 + 2*t
            a(f"v_cvt_pk_bf16_f32 v{o}, v{u}, v{u+1}\nv_cvt_pk_bf16_f32 v{o+1}, v{u+2}, v{u+3}")
        a(f"buffer_store_dwordx4 {vr(O+tt*4,4)}, v3, s[4:7], s34 offen offset:{tt*1024} sc1")
    a("s_branch L_g1_next")
    a("L_g1_idle:\ns_branch L_g1_next")
    a("L_g1_mv:")
    mloop(True)
    for i in range(4):
        o = O + i*4
        for tt in range(2):
            c = acc(i, tt)
            a(f"v_cvt_pk_bf16_f32 v{o+2*tt}, v{c}, v{c+1}\nv_cvt_pk_bf16_f32 v{o+2*tt+1}, v{c+2}, v{c+3}")
    for i in range(4): a(f"buffer_store_dwordx4 {vr(O+i*4,4)}, v3, s[4:7], s34 offen offset:{i*1024} sc1")
    a(f"""
    L_g1_next:
    s_add_u32 s34, s34, s35
    s_mov_b32 s40, s46
    s_mov_b32 s46, s47
    s_mov_b32 s47, s48
    s_mov_b32 s48, s40
    s_add_u32 s42, s42, 1
    s_cmp_lt_u32 s42, {NSEG}
    s_cbranch_scc1 L_g1_loop
    s_waitcnt vmcnt(0)
    s_barrier
    s_cmp_lg_u32 s29, 0
    s_cbranch_scc1 L_end
    v_mov_b32 v5, s42
    buffer_store_dword v5, off, s[4:7], s36 sc1
    s_branch L_end
    """)
```

```python
import sys; sys.path.insert(0,'tools'); sys.path.insert(0,'gen')
from gasm import *
from layout import *
from att import poll
from rec2 import wait_init, NHELP
import helper

def gen_g3(a, nset=3, npar=2):
    AA = 16; AB = 32; ST = 48
    def WO(ks, t, n=4, off=0): return vr(ks*8 + t*4 + off, n, 'a')
    def WH(ks, t, n=4, off=0): return vr(144 + ks*8 + t*4 + off, n, 'v')
    a(f"""
    L_g3:
    v_lshrrev_b32 v1, 6, v0
    v_readfirstlane_b32 s29, v1
    v_and_b32 v2, 63, v0
    v_lshlrev_b32 v3, 4, v2
    s_load_dwordx2 s[8:9], s[0:1], 40
    s_load_dwordx2 s[12:13], s[0:1], 80
    s_load_dwordx2 s[16:17], s[0:1], 96
    s_mov_b32 s10, 5242880
    s_mov_b32 s11, 0x20000
    s_mov_b32 s14, 2211840
    s_mov_b32 s15, 0x20000
    s_mov_b32 s18, 2621440
    s_mov_b32 s19, 0x20000
    s_mul_i32 s31, s29, 14
    s_min_u32 s31, s31, 40
    v_lshrrev_b32 v4, 2, v2
    v_mul_u32_u24 v4, 1280, v4
    v_and_b32 v5, 3, v2
    v_lshl_add_u32 v4, v5, 4, v4
    s_lshl_b32 s38, s30, 6
    v_add_u32 v4, s38, v4
    s_mul_i32 s38, s29, {1024*1280}
    v_add_u32 v8, s38, v4
    s_mul_i32 s38, s31, {32*1280}
    v_add_u32 v9, s38, v4                 ; w2 voffset
    s_mul_i32 s45, s29, 40960
    v_lshrrev_b32 v6, 2, v2
    v_lshlrev_b32 v6, 6, v6
    v_lshl_add_u32 v6, v5, 4, v6
    v_add_u32 v10, s45, v6
    v_lshrrev_b32 v7, 4, v2
    v_lshl_add_u32 v11, v7, 8, v10
    s_waitcnt lgkmcnt(0)
    """)
    chunks = [('o', 8*c, 8) for c in range(4)] + [('h', 0, 8), ('h', 8, 6)]
    def issue(ci):
        kind, k0, n = chunks[ci]
        buf = (ci & 1) * 16384
        srd, v = ('s[8:11]', 8) if kind == 'o' else ('s[12:15]', 9)
        for j in range(2*n):
            a(f"s_add_u32 m0, s45, {buf + j*1024}")
            a(f"buffer_load_dwordx4 v{v}, {srd}, 0 offen lds")
            a(f"v_add_u32 v{v}, {16*1280}, v{v}")
    wait_init(a, 'g3')
    issue(0); issue(1)
    for ci, (kind, k0, n) in enumerate(chunks):
        nxt = 2*chunks[ci+1][2] if ci + 1 < len(chunks) else 0
        a(f"s_waitcnt vmcnt({nxt})")
        buf = (ci & 1) * 16384
        for kk in range(n):
            for t in range(2):
                for hh in range(2):
                    if kind == 'o': a(f"ds_read_b64_tr_b16 {WO(k0+kk,t,2,2*hh)}, v10 offset:{buf + kk*2048 + hh*1024 + 8*t}")
                    else: a(f"ds_read_b64_tr_b16 {WH(k0+kk,t,2,2*hh)}, v11 offset:{buf + kk*2048 + hh*256 + 8*t}")
            if kk % 2 == 1: a("s_waitcnt lgkmcnt(0)")
        if ci + 2 < len(chunks): issue(ci + 2)
    a("s_cmp_lg_u32 s29, 3\ns_cbranch_scc1 L_g3_nz")
    for i in range(16): a(f"v_mov_b32 v{144+i}, 0")
    a(f"""
    L_g3_nz:
    v_min_u32 v4, 13, v2
    v_add_u32 v4, {F_F}, v4
    v_lshlrev_b32 v4, 7, v4
    v_add_u32 v4, {FLAG_BASE}, v4
    v_and_b32 v5, 7, v2
    s_lshl_b32 s38, s29, 3
    s_add_u32 s38, s38, {F_ATT}
    v_add_u32 v5, s38, v5
    v_lshlrev_b32 v5, 7, v5
    v_add_u32 v5, {FLAG_BASE}, v5
    v_and_b32 v8, 15, v2
    v_lshlrev_b32 v9, 2, v8
    s_and_b32 s38, s29, 1
    s_lshl_b32 s38, s38, 4
    v_add_u32 v8, s38, v8
    v_mul_u32_u24 v8, 1280, v8
    v_lshl_add_u32 v8, v7, 4, v8
    s_lshl_b32 s38, s30, 6
    v_add_u32 v8, s38, v8
    s_lshl_b32 s38, s29, 12
    v_add_u32 v10, s38, v3
    s_and_b32 s38, s29, 1
    s_lshl_b32 s38, s38, 11
    v_add_u32 v11, s38, v3
    s_mov_b32 s42, s28
    s_mov_b32 s50, 0
    s_mov_b32 s46, 0
    """)
    wait_init(a, 'g3g', off=132)
    a(f"""
    L_g3_gd:
    s_barrier
    L_g3_loop:
    s_add_u32 s44, s42, 1
    s_mul_i32 s33, s42, {54*2048}
    s_lshl_b32 s38, s31, 11
    s_add_u32 s33, s33, s38
    s_add_u32 s33, s33, {H_BASE}
    s_lshl_b32 s34, s42, 18
    s_lshl_b32 s38, s29, 16
    s_add_u32 s34, s34, s38
    s_add_u32 s34, s34, {O_BASE}
    s_lshl_b32 s35, s42, 7
    s_add_u32 s35, s35, {G_BASE}
    s_and_b32 s38, s42, {npar-1}
    s_lshl_b32 s38, s38, 12
    v_add_u32 v6, s38, v5
    buffer_load_dword v12, v9, s[4:7], s35 offen sc1
    buffer_load_dword v13, v9, s[4:7], s35 offen offset:64 sc1
    """)
    poll(a, 4, 14, 's44', 'g3a', sleep=8)
    def phase(n, sb, wf, acc):
        def ld(ks):
            if ks and ks % 2 == 0: a(f"s_add_u32 {sb}, {sb}, 4096")
            for tt in range(2):
                a(f"buffer_load_dwordx4 {vr(ST+(ks%12)*8+tt*4,4)}, v3, s[4:7], {sb} offen offset:{(ks&1)*2048+tt*1024} sc1")
        for ks in range(min(12, n)): ld(ks)
        for ks in range(n):
            a(f"s_waitcnt vmcnt({2*(min(n, ks+12)-ks-1)})")
            for tt in range(2):
                for t in range(2):
                    d = vr(acc+(tt*2+t)*4,4)
                    a(f"v_mfma_f32_16x16x32_bf16 {d}, {wf(ks,t)}, {vr(ST+(ks%12)*8+tt*4,4)}, {'0' if ks==0 else d}")
            if ks + 12 < n: ld(ks+12)
    phase(14, 's33', WH, AB)
    poll(a, 6, 14, 's44', 'g3b', sleep=2)
    phase(32, 's34', WO, AA)
    for tt in range(2):
        for i in range(8):
            x = tt*8+i
            a(f"v_sub_f32 v{AA+x}, v{AA+x}, v{AB+x}")
            a(f"v_fma_f32 v{AB+x}, v{12+tt}, v{AA+x}, v{AB+x}")
    a("v_add_u32 v14, s46, v10\nv_add_u32 v15, s46, v11")
    for i in range(4): a(f"ds_write_b128 v14, {vr(AB+4*i,4)} offset:{i*1024}")
    a("s_waitcnt lgkmcnt(0)\ns_barrier\ns_cmp_ge_u32 s29, 2\ns_cbranch_scc1 L_g3_next")
    for w in range(4):
        for t in range(2): a(f"ds_read_b128 {vr(ST+(w*2+t)*4,4)}, v15 offset:{w*4096+t*1024}")
    a("s_waitcnt lgkmcnt(0)")
    for i in range(8): a(f"v_add_f32 v{ST+i}, v{ST+i}, v{ST+8+i}\nv_add_f32 v{ST+16+i}, v{ST+16+i}, v{ST+24+i}")
    for i in range(8): a(f"v_add_f32 v{ST+i}, v{ST+i}, v{ST+16+i}")
    for i in range(4): a(f"v_cvt_pk_bf16_f32 v{ST+32+i}, v{ST+2*i}, v{ST+2*i+1}")
    a(f"""
    s_mul_i32 s38, s42, 40960
    buffer_store_dwordx4 {vr(ST+32,4)}, v8, s[16:19], s38 offen
    s_nop 1
    L_g3_next:
    s_xor_b32 s46, s46, 16384
    s_add_u32 s42, s42, {nset}
    s_cmp_lt_u32 s42, {NSEG}
    s_cbranch_scc1 L_g3_loop
    s_branch L_end
    """)
```

```python
import sys; sys.path.insert(0,'tools'); sys.path.insert(0,'gen')
from gasm import *
from layout import *
from rec2 import NHELP, wait_init

def prefetch(a, lo):
    a(f"""
    s_load_dwordx4 s[60:63], s[0:1], 16
    s_load_dwordx4 s[64:67], s[0:1], 32
    s_lshr_b32 s33, s2, 3
    s_sub_u32 s33, s33, {16 if lo else 8}
    s_lshl_b32 s33, s33, 8
    v_add_u32 v40, s33, v0
    v_lshrrev_b32 v41, 4, v40
    v_add_u32 v41, {384 if lo else 256}, v41
    v_lshlrev_b32 v41, 13, v41
    v_bfe_u32 v42, v0, 1, 3
    v_lshl_add_u32 v41, v42, 10, v41
    v_and_b32 v42, 1, v0
    v_lshl_add_u32 v41, v42, 7, v41
    s_and_b32 s34, s2, 3
    s_lshl_b32 s33, s34, 8
    v_add_u32 v41, s33, v41
    s_waitcnt lgkmcnt(0)
    global_load_dword v255, v41, s[62:63]
    global_load_dword v255, v41, s[64:65]
    """)
    if lo:
        a("global_load_dword v255, v41, s[60:61]\ns_mul_i32 s33, s34, 163840\ns_mov_b32 s34, 52429")
        for k in range(3):
            a(f"""
            v_min_u32 v41, 10239, v40
            v_lshrrev_b32 v42, 8, v41
            v_mul_u32_u24 v42, s34, v42
            v_lshrrev_b32 v42, 18, v42
            v_mul_u32_u24 v42, {3*163840}, v42
            v_lshl_add_u32 v41, v41, 7, v42
            v_add_u32 v41, s33, v41
            global_load_dword v255, v41, s[66:67]
            v_add_u32 v40, 4096, v40
            """)

def gen_fill(a):
    a(f"""
    s_load_dwordx2 s[24:25], s[0:1], 104
    s_mov_b32 s26, 256
    s_mov_b32 s27, 0x20000
    v_lshlrev_b32 v2, 4, v0
    s_mov_b32 s22, {SENT}
    v_mov_b32 v32, s22
    v_mov_b32 v33, s22
    v_mov_b32 v34, s22
    v_mov_b32 v35, s22
    s_mov_b32 s49, s48
    L_h_f1:
    s_mul_i32 s21, s49, 37450
    s_lshr_b32 s21, s21, 24
    s_mul_i32 s23, s21, 448
    s_sub_u32 s23, s49, s23
    s_lshl_b32 s21, s21, 21
    s_lshl_b32 s23, s23, 12
    s_add_u32 s21, s21, s23
    s_add_u32 s21, s21, {PART_BASE}
    buffer_store_dwordx4 v[32:35], v2, s[4:7], s21 offen sc1
    s_add_u32 s49, s49, {NHELP}
    s_cmp_lt_u32 s49, 1792
    s_cbranch_scc1 L_h_f1
    v_and_b32 v3, 127, v0
    v_lshlrev_b32 v3, 4, v3
    v_lshrrev_b32 v4, 7, v0
    v_lshl_add_u32 v4, v4, 13, v3
    s_mov_b32 s49, s48
    L_h_f2:
    s_lshl_b32 s21, s49, 15
    """)
    for i in range(4): a(f"buffer_store_dwordx4 v[32:35], v2, s[4:7], s21 offen sc1\ns_add_u32 s21, s21, 4096")
    a(f"""
    buffer_store_dwordx4 v[32:35], v4, s[4:7], s21 offen sc1
    s_add_u32 s49, s49, {NHELP}
    s_cmp_lt_u32 s49, 256
    s_cbranch_scc1 L_h_f2
    v_mov_b32 v36, 0
    v_mov_b32 v37, 0
    v_mov_b32 v38, 0
    v_mov_b32 v39, 0
    s_sub_u32 s21, s48, 8
    s_cmp_ge_u32 s21, 6
    s_cbranch_scc1 L_h_nf
    s_lshl_b32 s21, s21, 12
    s_add_u32 s21, s21, {FLAG_BASE}
    buffer_store_dwordx4 v[36:39], v2, s[4:7], s21 offen sc1
    L_h_nf:
    L_h_nc:
    s_waitcnt vmcnt(0) lgkmcnt(0)
    s_barrier
    s_cmp_lg_u32 s29, 0
    s_cbranch_scc1 L_h_fd
    v_mov_b32 v5, 1
    s_mov_b64 exec, 1
    buffer_atomic_add v5, off, s[24:27], 0 sc0
    s_waitcnt vmcnt(0)
    v_readfirstlane_b32 s21, v5
    s_cmp_lg_u32 s21, {NHELP+7}
    s_cbranch_scc1 L_h_nd1
    buffer_atomic_swap v5, off, s[24:27], 0 offset:128
    L_h_nd1:
    s_mov_b64 exec, -1
    s_branch L_h_fd
    L_h_fd:
    """)
    rstamp(a, 10, 40)

RS1 = 12
RS2 = 1
RS3 = 3
def gen_helper(a, dbg=None):
    a(f"""
    L_hlp:
    s_load_dwordx2 s[8:9], s[0:1], 0
    s_load_dwordx2 s[12:13], s[0:1], 88
    s_load_dwordx2 s[16:17], s[0:1], 104
    s_mov_b32 s10, 2621440
    s_mov_b32 s11, 0x20000
    s_mov_b32 s14, 1280
    s_mov_b32 s15, 0x20000
    s_mov_b32 s18, 256
    s_mov_b32 s19, 0x20000
    v_lshrrev_b32 v1, 6, v0
    v_readfirstlane_b32 s29, v1
    v_lshlrev_b32 v2, 4, v0
    s_mov_b32 s22, {SENT}
    v_mov_b32 v32, s22
    v_mov_b32 v33, s22
    v_mov_b32 v34, s22
    v_mov_b32 v35, s22
    s_waitcnt lgkmcnt(0)
    s_cmp_lt_u32 s30, {NHELP}
    s_cbranch_scc1 L_h_lo
    s_sub_u32 s30, s30, {NHELP}
    s_cmp_ge_u32 s30, 8
    s_cbranch_scc1 L_h_gate
    s_lshl_b32 s21, s30, 21
    s_lshl_b32 s23, s29, 8
    s_add_u32 s21, s21, s23
    s_add_u32 s21, s21, {0x1F4000+4096}
    s_add_u32 s23, s21, 8192
    s_mov_b32 s24, -1
    s_mov_b32 s25, -1
    """)
    for it in range(4):
        for so, sm in (('s21','s24'),('s23','s25')):
            a(f"""
            buffer_store_dword v32, off, s[4:7], {so} sc1
            s_waitcnt vmcnt(0)
            s_memtime s[26:27]
            s_waitcnt lgkmcnt(0)
            buffer_load_dword v4, off, s[4:7], {so} sc1
            s_waitcnt vmcnt(0)
            s_memtime s[36:37]
            s_waitcnt lgkmcnt(0)
            s_sub_u32 s26, s36, s26
            s_min_u32 {sm}, {sm}, s26
            """)
    a(f"""
    v_mov_b32 v4, s24
    v_mov_b32 v5, s25
    v_lshlrev_b32 v6, 3, v1
    ds_write_b64 v6, v[4:5]
    s_waitcnt lgkmcnt(0)
    s_barrier
    s_cmp_lg_u32 s29, 0
    s_cbranch_scc1 L_end
    ds_read_b128 v[8:11], v6
    ds_read_b128 v[12:15], v6 offset:16
    s_waitcnt lgkmcnt(0)
    v_min3_u32 v8, v8, v10, v12
    v_min3_u32 v9, v9, v11, v13
    v_min_u32 v8, v8, v14
    v_min_u32 v9, v9, v15
    v_readfirstlane_b32 s24, v8
    v_readfirstlane_b32 s25, v9
    s_cmp_lt_u32 s25, s24
    s_cselect_b32 s26, 8192, 0
    s_getreg_b32 s27, hwreg(HW_REG_XCC_ID)
    s_and_b32 s27, s27, 4
    s_lshl_b32 s27, s27, 11
    s_xor_b32 s26, s26, s27
    v_mov_b32 v3, s26
    s_lshl_b32 s21, s30, 2
    s_add_u32 s21, s21, {POL_BASE}
    s_mov_b64 exec, 1
    buffer_atomic_swap v3, off, s[4:7], s21
    s_waitcnt vmcnt(0)
    v_mov_b32 v5, 1
    buffer_atomic_add v5, off, s[16:19], 0 sc0
    s_waitcnt vmcnt(0)
    v_readfirstlane_b32 s21, v5
    s_cmp_lg_u32 s21, {NHELP+7}
    s_cbranch_scc1 L_end
    buffer_atomic_swap v5, off, s[16:19], 0 offset:128
    s_branch L_end
    L_h_gate:
    """)
    prefetch(a, True)
    a(f"""
    s_sub_u32 s31, s30, 8
    v_and_b32 v6, 31, v0
    v_lshlrev_b32 v6, 2, v6
    """)
    for i in range(10): a(f"buffer_load_dword v{20+i}, v6, s[12:15], 0 offen offset:{128*i}")
    a(f"""
    L_h_g1:
    v_lshrrev_b32 v5, 5, v0
    s_lshl_b32 s21, s31, 3
    v_add_u32 v5, s21, v5
    v_mul_u32_u24 v7, 1280, v5
    v_add_u32 v7, v7, v6
    """)
    for i in range(10): a(f"buffer_load_dword v{10+i}, v7, s[8:11], 0 offen offset:{128*i}")
    a("v_mov_b32 v8, 0\ns_waitcnt vmcnt(0)")
    for i in range(10):
        a(f"v_lshlrev_b32 v30, 16, v{10+i}\nv_lshlrev_b32 v31, 16, v{20+i}\nv_fmac_f32 v8, v30, v31")
        a(f"v_and_b32 v30, 0xffff0000, v{10+i}\nv_and_b32 v31, 0xffff0000, v{20+i}\nv_fmac_f32 v8, v30, v31")
    for sh in (1,2,4,8): a(f"v_add_f32_dpp v8, v8, v8 row_ror:{sh} row_mask:0xf bank_mask:0xf")
    a(f"""
    v_mov_b32 v9, v8
    v_permlane16_swap_b32 v8, v9
    v_add_f32 v8, v8, v9
    v_mul_f32 v8, 0xbfb8aa3b, v8
    v_exp_f32 v8, v8
    v_add_f32 v8, 1.0, v8
    v_rcp_f32 v8, v8
    v_lshlrev_b32 v5, 2, v5
    s_mov_b32 s21, {G_BASE}
    s_mov_b32 exec_lo, 1
    s_mov_b32 exec_hi, 1
    buffer_atomic_swap v8, v5, s[4:7], s21 offen
    s_mov_b64 exec, -1
    s_add_u32 s31, s31, 16
    s_cmp_lt_u32 s31, 256
    s_cbranch_scc1 L_h_g1
    s_waitcnt vmcnt(0)
    s_barrier
    s_cmp_lg_u32 s29, 0
    s_cbranch_scc1 L_end
    v_mov_b32 v5, 1
    s_mov_b64 exec, 1
    buffer_atomic_add v5, off, s[16:19], 0 offset:4 sc0
    s_waitcnt vmcnt(0)
    v_readfirstlane_b32 s21, v5
    s_cmp_lg_u32 s21, 15
    s_cbranch_scc1 L_end
    buffer_atomic_swap v5, off, s[16:19], 0 offset:132
    s_branch L_end
    L_h_lo:
    s_mov_b32 s48, s30
    """)
    gen_fill(a)
    prefetch(a, True)
    a(f"""
    s_cmp_ge_u32 s29, 2
    s_cbranch_scc1 L_end
    """)
    gen_red(a, dbg)

def gen_red(a, dbg=None):
    D = 64; RA = 96; SEL = 16; SN = 32
    wait_init(a, 'red', vt=6)
    a(f"""
    s_mul_i32 s32, s29, 40
    s_add_u32 s32, s32, s30
    s_mov_b32 s38, {POL_BASE}
    buffer_load_dwordx4 v[44:47], off, s[4:7], s38 sc1
    buffer_load_dwordx4 v[48:51], off, s[4:7], s38 offset:16 sc1
    v_and_b32 v21, 63, v0
    v_lshlrev_b32 v2, 4, v21
    v_lshlrev_b32 v3, 7, v21
    v_lshrrev_b32 v23, 4, v21
    v_bfe_u32 v24, v21, 3, 1
    v_and_b32 v26, 1, v21
    v_lshlrev_b32 v26, 4, v26
    v_mov_b32 v27, 0x3f80
    v_lshlrev_b32 v27, v26, v27
    v_bfe_u32 v28, v21, 1, 2
    v_mov_b32 v26, 0
    """)
    for k in range(4): a(f"v_cmp_eq_u32 vcc, {k}, v28\nv_cndmask_b32 v{SEL+k}, v26, v27, vcc")
    a(f"""
    s_lshl_b32 s38, s32, 14
    v_add_u32 v10, s38, v2
    v_add_u32 v11, 4096, v10
    v_and_b32 v29, 1, v23
    v_and_b32 v27, 3, v21
    v_lshl_add_u32 v26, v29, 2, v27
    v_lshlrev_b32 v26, 4, v26
    v_bfe_u32 v28, v21, 2, 1
    v_lshl_add_u32 v26, v28, 3, v26
    v_lshrrev_b32 v28, 1, v23
    v_lshl_add_u32 v26, v28, 2, v26
    s_lshl_b32 s38, s32, 7
    s_cmp_ge_u32 s32, 64
    s_cselect_b32 s39, 8192, 0
    s_add_u32 s38, s38, s39
    s_add_u32 s38, s38, {MEM_BASE+MEM_STEP}
    v_add_u32 v26, s38, v26
    v_lshl_add_u32 v26, v24, 21, v26
    v_cmp_eq_u32 vcc, 1, v24
    s_waitcnt vmcnt(0)
    v_cndmask_b32 v27, v44, v45, vcc
    v_cndmask_b32 v28, v46, v47, vcc
    v_and_b32 v27, 8192, v27
    v_and_b32 v28, 8192, v28
    v_add_u32 v12, v26, v27
    v_add_u32 v13, v26, v28
    v_add_u32 v13, {2*MEM_COPY}, v13
    """)
    for i in range(4): a(f"v_readfirstlane_b32 s{8+i}, v{48+i}")
    for i in range(4): a(f"s_and_b32 s{8+i}, s{8+i}, 8192\ns_add_u32 s{8+i}, s{8+i}, {PART_BASE+i*PART_SLOT}")
    a(f"""
    s_bfe_u32 s14, s41, 0x8000a
    s_bfe_u32 s15, s41, 0x80012
    s_and_b32 s18, s41, 1023
    s_cmp_ge_u32 s32, 32
    s_cselect_b32 s38, s14, 0
    s_add_u32 s18, s18, s38
    s_cmp_ge_u32 s32, 64
    s_cselect_b32 s38, s15, 0
    s_add_u32 s18, s18, s38
    s_mov_b32 s33, 0
    s_mov_b32 s34, 0
    s_mov_b32 s50, 0
    s_mov_b32 s51, 0
    s_mov_b32 s47, 0
    s_mov_b32 s97, {SENT}
    L_red_step:
    s_lshr_b32 s49, s33, 2
    s_lshl_b32 s49, s49, 14
    s_add_u32 s49, s49, s8
    s_add_u32 s49, s49, 0x140000
    s_and_b32 s48, s32, 63
    s_lshl_b32 s48, s48, 7
    s_add_u32 s48, s48, s49
    s_add_u32 s48, s48, 0x40000
    L_red_cn:
    buffer_load_dword v4, off, s[4:7], s48 sc1
    s_waitcnt vmcnt(0)
    v_cmp_gt_i32 vcc, 0, v4
    s_cbranch_vccz L_red_cok
    s_sleep 1
    s_add_u32 s47, s47, 1
    s_cmp_lt_u32 s47, 0x80000
    s_cbranch_scc1 L_red_cn
    s_branch L_end
    L_red_cok:
    s_sleep {RS3}
    buffer_load_dword v4, v3, s[4:7], s49 offen sc1
    """)
    for i in range(8): a(f"buffer_store_dwordx4 {vr(SN,4)}, v{10 if i<4 else 11}, s[4:7], s11 offen offset:{(i&3)*1024} sc1\ns_sleep {RS2}")
    a(f"""
    s_waitcnt vmcnt(8)
    s_branch L_red_tc
    L_red_tl:
    buffer_load_dword v4, v3, s[4:7], s49 offen sc1
    s_waitcnt vmcnt(0)
    L_red_tc:
    s_memrealtime s[52:53]
    v_cmp_gt_i32 vcc, 0, v4
    s_cbranch_vccz L_red_tok
    s_sleep 6
    s_add_u32 s50, s50, 1
    s_cmp_lt_u32 s50, 0x40000
    s_cbranch_scc1 L_red_tl
    s_branch L_end
    L_red_tok:
    s_waitcnt lgkmcnt(0)
    v_subrev_u32 v4, s52, v4
    v_lshlrev_b32 v4, 1, v4
    v_max_i32_dpp v4, v4, v4 row_ror:1 row_mask:0xf bank_mask:0xf
    v_max_i32_dpp v4, v4, v4 row_ror:2 row_mask:0xf bank_mask:0xf
    v_max_i32_dpp v4, v4, v4 row_ror:4 row_mask:0xf bank_mask:0xf
    v_max_i32_dpp v4, v4, v4 row_ror:8 row_mask:0xf bank_mask:0xf
    v_readlane_b32 s38, v4, 0
    v_readlane_b32 s39, v4, 16
    v_readlane_b32 s36, v4, 32
    v_readlane_b32 s37, v4, 48
    s_max_i32 s38, s38, s39
    s_max_i32 s36, s36, s37
    s_max_i32 s38, s38, s36
    s_max_i32 s38, s38, -4000
    s_min_i32 s38, s38, 0
    s_mul_i32 s38, s38, 14
    s_ashr_i32 s38, s38, 5
    s_add_i32 s38, s38, s18
    s_max_i32 s38, s38, 0
    """)
    if dbg: a("s_mov_b32 s60, s38")
    a(""".p2align 3
    L_red_d1:
    s_sub_u32 s38, s38, 1
    s_cbranch_scc0 L_red_d1
    L_red_ld:
    """)
    if dbg: a("s_memtime s[54:55]")
    for i in range(8): a(f"buffer_load_dwordx4 {vr(D+4*i,4)}, v{10 if i<4 else 11}, s[4:7], s8 offen offset:{(i&3)*1024} sc1")
    for i in range(8):
        a(f"s_waitcnt vmcnt({7-i})")
        if dbg and i == 0: a("s_memtime s[56:57]")
        a(f"v_mfma_f32_16x16x32_bf16 {vr(RA,4)}, {vr(D+4*i,4)}, {vr(SEL,4)}, {'0' if i==0 else vr(RA,4)}")
        if i == 0: a(f"v_max3_u32 v5, v{D}, v{D+1}, v{D+2}")
        else: a(f"v_max3_u32 v5, v5, v{D+4*i-1}, v{D+4*i}\nv_max3_u32 v5, v5, v{D+4*i+1}, v{D+4*i+2}")
    a(f"""
    v_max_u32 v5, v5, v{D+31}
    v_cmp_eq_u32 vcc, s97, v5
    s_cbranch_vccnz L_red_fail
    v_permlane32_swap_b32 v{RA}, v{RA+2}
    v_permlane32_swap_b32 v{RA+1}, v{RA+3}
    v_add_f32 v{RA}, v{RA}, v{RA+2}
    v_add_f32 v{RA+1}, v{RA+1}, v{RA+3}
    v_cvt_pk_bf16_f32 v{RA}, v{RA}, v{RA+1}
    buffer_store_dword v{RA}, v12, s[4:7], s34 offen sc1
    buffer_store_dword v{RA}, v13, s[4:7], s34 offen sc1
    """)
    if dbg:
        a(f"""
        s_memtime s[58:59]
        s_waitcnt lgkmcnt(0)
        v_writelane_b32 v6, s54, 0
        v_writelane_b32 v6, s56, 1
        v_writelane_b32 v6, s58, 2
        v_writelane_b32 v6, s60, 3
        v_writelane_b32 v6, s50, 4
        v_writelane_b32 v6, s51, 5
        s_lshl_b32 s38, s32, 6
        s_add_u32 s38, s38, s33
        s_lshl_b32 s38, s38, 8
        s_add_u32 s38, s38, {108*MB}
        v_lshrrev_b32 v7, 2, v2
        """)
    a(f"""
    s_sleep {RS1}
    """)
    if dbg: a("buffer_store_dword v6, v7, s[4:7], s38 offen")
    a(f"""
    s_mov_b32 s38, s8
    s_mov_b32 s8, s9
    s_mov_b32 s9, s10
    s_mov_b32 s10, s11
    s_mov_b32 s11, s38
    s_add_u32 s34, s34, {MEM_STEP}
    s_add_u32 s33, s33, 1
    s_cmp_lt_u32 s33, 63
    s_cbranch_scc1 L_red_step
    s_branch L_end
    L_red_fail:
    s_add_u32 s51, s51, 1
    s_cmp_lt_u32 s51, 0x40000
    s_cbranch_scc1 L_red_ld
    s_branch L_end
    """)
```

```python
MB = 1 << 20
MEM_BASE   = 0
MEM_COPY   = 2 * MB
MEM_STEP   = 32768
PART_BASE  = 8 * MB
PART_SLOT  = 2 * MB
KV_BASE    = 16 * MB
KMV_BASE   = 48 * MB
H_BASE     = 56 * MB
Q_BASE     = 64 * MB
O_BASE     = 80 * MB
FLAG_BASE  = 96 * MB
G_BASE     = FLAG_BASE + 65536
POL_BASE   = FLAG_BASE + 98304
SENT = 0xFFBFFFBF
F_REC, F_KV, F_Q, F_F, F_ATT = 0, 64, 96, 112, 128
FLAG_REC = FLAG_BASE
NSEG = 64
RCNT_BASE = FLAG_BASE + 32768

DBG = False
def rstamp(a, slot, vt=1):
    import layout
    if not layout.DBG: return
    a(f"""
    s_memrealtime s[92:93]
    s_lshl_b32 s94, s2, 7
    s_add_u32 s94, s94, {FLAG_BASE+262144+4*slot}
    s_waitcnt lgkmcnt(0)
    v_mov_b32 v{vt}, s92
    buffer_store_dword v{vt}, off, s[4:7], s94
    """)
```

```python
import sys; sys.path.insert(0,'tools'); sys.path.insert(0,'gen')
from gasm import *
from layout import *

L_WO   = 0
L_MEM  = 81920
L_KV   = 94208
L_Z    = 131072
L_VM   = 135168

def wq(t,b): return vr((t*10+b)*8, 8, 'a')
def wk(t,b):
    if t==0: return vr(160+b*8, 8, 'a')
    if b<2: return vr(240+b*8, 8, 'a')
    return vr(112+(b-2)*8, 8, 'v')
def wv(b): return vr(176+b*8, 8, 'v')
def sub2(rng, p):
    pre = rng[0]; lo = int(rng[2:rng.index(':')])
    return f'{pre}[{lo+2*p}:{lo+2*p+1}]'

V_BIG=0; V_IDX=1; V_L16=2; V_MEMG=3; V_ZW=4; V_ZR=5; V_VW=6; V_VR=7; V_PS4=8; V_PS2=9; V_RL0=10; V_PUB=11
V_CM=12; V_WA=13; V_T0=14; V_T1=15; V_SEL=16
M=20; ACC=60; KX=80
NHELP = 40
NRST = 10

def wait_init(a, tag, fail='L_end', vt=1, off=128):
    a(f"""
    s_load_dwordx2 s[20:21], s[0:1], 104
    s_mov_b32 s22, 256
    s_mov_b32 s23, 0x20000
    s_mov_b32 s38, 0
    s_waitcnt lgkmcnt(0)
    L_{tag}_wi:
    buffer_load_dword v{vt}, off, s[20:23], 0 offset:{off} sc1
    s_waitcnt vmcnt(0)
    v_cmp_eq_u32 vcc, 0, v{vt}
    s_cbranch_vccz L_{tag}_wd
    s_sleep 8
    s_add_u32 s38, s38, 1
    s_cmp_lt_u32 s38, 0x20000
    s_cbranch_scc1 L_{tag}_wi
    s_branch {fail}
    L_{tag}_wd:
    """)

def gen_rec(a, dbg=None, G1AT=9, G2AT=24, trace=False):
    nsteps = 63
    a(f"""
    s_load_dwordx2 s[8:9], s[0:1], 16
    s_load_dwordx2 s[12:13], s[0:1], 24
    s_load_dwordx2 s[16:17], s[0:1], 32
    s_load_dwordx2 s[44:45], s[0:1], 40
    s_load_dwordx2 s[24:25], s[0:1], 8
    s_mov_b32 s10, 5242880
    s_mov_b32 s11, 0x20000
    s_mov_b32 s14, 5242880
    s_mov_b32 s15, 0x20000
    s_mov_b32 s18, 5242880
    s_mov_b32 s19, 0x20000
    s_mov_b32 s46, 5242880
    s_mov_b32 s47, 0x20000
    s_mov_b32 s26, 10240
    s_mov_b32 s27, 0x20000
    v_lshrrev_b32 v20, 6, v0
    v_readfirstlane_b32 s29, v20
    v_and_b32 v21, 63, v0
    s_lshr_b32 s30, s28, 1
    s_and_b32 s31, s28, 1
    v_lshlrev_b32 v{V_L16}, 4, v21
    v_lshrrev_b32 v23, 4, v21
    v_and_b32 v24, 1, v23
    s_lshl_b32 s38, s29, 1
    v_or_b32 v24, s38, v24
    v_lshlrev_b32 v24, 1, v24
    v_and_b32 v25, 15, v21
    v_xor_b32 v25, v25, v24
    v_lshlrev_b32 v25, 4, v25
    s_lshl_b32 s38, s29, 2
    v_add_u32 v23, s38, v23
    v_lshlrev_b32 v23, 13, v23
    s_lshl_b32 s38, s30, 8
    v_add3_u32 v22, v23, v25, s38
    v_lshrrev_b32 v23, 3, v21
    v_lshrrev_b32 v24, 2, v23
    s_and_b32 s38, s29, 1
    s_lshl_b32 s38, s38, 1
    v_or_b32 v24, s38, v24
    v_lshlrev_b32 v24, 1, v24
    v_and_b32 v25, 7, v21
    v_xor_b32 v25, v25, v24
    v_lshlrev_b32 v25, 4, v25
    s_lshl_b32 s38, s29, 3
    v_add_u32 v23, s38, v23
    v_lshlrev_b32 v23, 13, v23
    s_lshl_b32 s38, s30, 8
    s_lshl_b32 s39, s31, 7
    s_add_u32 s38, s38, s39
    v_add3_u32 v26, v23, v25, s38
    s_mul_i32 s33, s30, 163840
    s_mul_i32 s38, s31, 81920
    s_add_u32 s33, s33, s38
    s_lshl_b32 s53, s29, 10
    s_add_u32 s33, s33, s53
    s_waitcnt lgkmcnt(0)
    """)
    def issue_block(b):
        buf = (b & 3) * 40960
        if b < 10:
            for mi, srd in enumerate(('s[8:11]', 's[12:15]')):
                for j in range(4):
                    a(f"s_add_u32 m0, s53, {buf + mi*16384 + j*4096}")
                    a(f"s_mov_b32 s38, {(64*b + 16*j) * 8192}")
                    a(f"buffer_load_dwordx4 v22, {srd}, s38 offen lds")
            for j in range(2):
                a(f"s_add_u32 m0, s53, {buf + 32768 + j*4096}")
                a(f"s_mov_b32 s38, {(64*b + 32*j) * 8192}")
                a(f"buffer_load_dwordx4 v26, s[16:19], s38 offen lds")
        else:
            for j in range(10):
                a(f"s_add_u32 m0, s53, {buf + j*4096}")
                a(f"s_add_u32 s38, s33, {(b-10)*40960 + j*4096}")
                a(f"buffer_load_dwordx4 v{V_L16}, s[44:47], s38 offen lds")
    for b in range(3): issue_block(b)
    a(f"""
    v_lshrrev_b32 v23, 5, v21          ; gb>>1
    v_bfe_u32 v24, v21, 4, 1           ; gb&1
    v_bfe_u32 v25, v21, 2, 1           ; r&1
    v_bfe_u32 v27, v21, 3, 1           ; r>>1
    v_lshlrev_b32 v28, 4, v23
    v_lshl_add_u32 v28, v24, 2, v28
    v_add_u32 v28, v28, v25
    v_lshl_add_u32 v28, v27, 3, v28
    v_lshl_add_u32 v29, v24, 1, v25
    v_lshl_add_u32 v29, v27, 2, v29
    v_and_b32 v30, 3, v21
    v_lshlrev_b32 v30, 3, v30          ; c*8
    s_lshl_b32 s38, s29, 1
    v_xor_b32 v31, s38, v29
    v_lshlrev_b32 v31, 5, v31
    v_lshl_add_u32 v31, v28, 8, v31
    v_add_u32 v31, v31, v30
    v_xor_b32 v32, 32, v31
    v_lshrrev_b32 v33, 1, v29
    v_xor_b32 v33, s29, v33
    v_lshlrev_b32 v33, 5, v33
    v_lshl_add_u32 v33, v28, 7, v33
    v_add_u32 v33, v33, v30
    v_lshlrev_b32 v34, 4, v24
    v_lshl_add_u32 v34, v23, 2, v34
    v_add_u32 v34, v34, v25
    v_mul_u32_u24 v34, 1280, v34
    v_lshl_add_u32 v35, v30, 1, v34
    v_lshl_add_u32 v35, v27, 6, v35
    s_lshl_b32 s38, s29, 7
    v_add_u32 v35, s38, v35
    v_add_u32 v36, v34, v30
    v_lshl_add_u32 v36, v27, 5, v36
    s_lshl_b32 s38, s29, 6
    v_add_u32 v36, s38, v36
    s_mul_i32 s38, s29, 20480
    v_add_u32 v{V_WA}, s38, v{V_L16}
    """)
    def consume_block(b):
        buf = (b & 3) * 40960
        if b < 10:
            a(f"v_add_u32 v38, {buf}, v31"); a(f"v_add_u32 v39, {buf}, v32"); a(f"v_add_u32 v40, {buf+32768}, v33")
            for p in range(4):
                ro = 32*(p>>1) + 2*(p&1)
                for t in range(2):
                    a(f"ds_read_b64_tr_b16 {sub2(wq(t,b),p)}, v{38+t} offset:{ro*256}")
                    a(f"ds_read_b64_tr_b16 {sub2(wk(t,b),p)}, v{38+t} offset:{16384+ro*256}")
                a(f"ds_read_b64_tr_b16 {sub2(wv(b),p)}, v40 offset:{ro*128}")
                if p == 1: a("s_waitcnt lgkmcnt(0)")
            a("s_waitcnt lgkmcnt(0)")
        else:
            ks = b - 10
            a(f"v_add_u32 v38, {buf}, v35"); a(f"v_add_u32 v39, {buf}, v36")
            for i in range(5):
                r = 44 + i*8
                if i < 4: ad, co = 38, (256*(i>>1) + 4*(i&1))*2
                else: ad, co = 39, 1024
                for p in range(4): a(f"ds_read_b64_tr_b16 v[{r+2*p}:{r+2*p+1}], v{ad} offset:{co + (8*(p>>1)+2*(p&1))*1280}")
                if i == 2: a("s_waitcnt lgkmcnt(0)")
            a("s_waitcnt lgkmcnt(0)")
            for i in range(5):
                r = 44 + i*8
                for hh in range(2): a(f"ds_write_b128 v{V_WA}, v[{r+4*hh}:{r+4*hh+3}] offset:{L_WO + (i*2+ks)*2048 + hh*1024}")
            a("s_waitcnt lgkmcnt(0)")
    for b in range(12):
        a(f"s_waitcnt vmcnt({10*(min(12, b+3)-b-1)})")
        a("s_barrier")
        if b + 3 < 12: issue_block(b + 3)
        consume_block(b)
        if dbg is not None and b < 10: a(f"s_memrealtime s[{66+2*b}:{67+2*b}]")
    a("s_barrier")
    a(f"""
    v_and_b32 v25, 7, v21
    v_mul_u32_u24 v26, 1280, v25
    v_lshrrev_b32 v27, 3, v21
    v_lshl_add_u32 v26, v27, 4, v26
    s_cmp_lg_u32 s29, 0
    s_cbranch_scc1 L_rec_nom0
    """)
    for b in range(10): a(f"s_mov_b32 m0, {L_MEM+b*1024}\ns_mov_b32 s38, {b*128}\nbuffer_load_dwordx4 v26, s[24:27], s38 offen lds")
    a("L_rec_nom0:")
    rstamp(a, 8, 41)
    if dbg is not None:
        for b in range(10): a(f"v_mov_b32 v41, s{66+2*b}\nbuffer_store_dword v41, off, s[4:7], s94 offset:{16+4*b}")
    wait_init(a, 'rec', 'L_rec_done', vt=41)
    rstamp(a, 9, 41)
    a(f"""
    s_mov_b32 s38, {POL_BASE}
    buffer_load_dwordx4 v[44:47], off, s[4:7], s38 sc1
    buffer_load_dwordx4 v[48:51], off, s[4:7], s38 offset:16 sc1
    v_and_b32 v22, 15, v21             ; n
    v_lshrrev_b32 v23, 4, v21          ; g
    v_bfe_u32 v24, v21, 3, 1           ; n>>3
    v_mov_b32 v26, 0x44444444
    v_mov_b32 v27, 0xeeeeeeee
    v_cmp_eq_u32 vcc, 1, v24
    v_cndmask_b32 v{V_IDX}, v26, v27, vcc
    v_mov_b32 v26, 0
    v_mov_b32 v27, 0x7149f2ca
    v_cndmask_b32 v{V_BIG}, v26, v27, vcc
    v_mov_b32 v27, 0xf149f2ca
    v_cmp_gt_u32 vcc, 2, v23
    v_cndmask_b32 v{V_CM}, v26, v27, vcc
    s_lshl_b32 s38, s29, 10
    s_add_u32 s38, s38, {L_Z}
    v_lshlrev_b32 v26, 5, v22
    v_lshl_add_u32 v26, v23, 3, v26
    v_add_u32 v{V_ZW}, s38, v26
    v_bfe_u32 v26, v21, 2, 2
    v_lshl_add_u32 v26, v23, 3, v26
    v_lshlrev_b32 v26, 5, v26
    v_and_b32 v27, 3, v21
    v_lshl_add_u32 v26, v27, 3, v26
    v_add_u32 v{V_ZR}, {L_Z}, v26
    v_and_b32 v29, 1, v23              ; h = g&1
    v_lshrrev_b32 v30, 1, v23          ; XY = g>>1
    v_lshlrev_b32 v26, 4, v22
    v_lshl_add_u32 v26, v29, 3, v26
    v_add_u32 v{V_VR}, {L_VM}, v26
    v_lshl_add_u32 v26, v30, 2, v26
    s_lshl_b32 s38, s29, 8
    s_add_u32 s38, s38, {L_VM}
    v_add_u32 v{V_VW}, s38, v26
    v_lshl_add_u32 v31, v29, 2, v27
    v_lshlrev_b32 v31, 4, v31
    v_lshrrev_b32 v26, 2, v22
    v_lshl_add_u32 v26, v30, 2, v26
    s_lshl_b32 s38, s29, 3
    v_add_u32 v26, s38, v26            ; R = 8w + 4XY + (n>>2)
    v_xor_b32 v28, s28, v26
    v_and_b32 v28, 63, v28
    v_lshl_add_u32 v26, v26, 14, v31
    v_lshl_add_u32 v{V_PS4}, v28, 7, v26
    v_lshl_add_u32 v26, v30, 1, v24
    s_lshl_b32 s38, s29, 2
    s_add_u32 s38, s38, 64
    v_add_u32 v26, s38, v26            ; R = 64 + 4w + 2XY + (n>>3)
    v_xor_b32 v28, s28, v26
    v_and_b32 v28, 63, v28
    v_lshl_add_u32 v26, v26, 14, v31
    v_lshl_add_u32 v26, v28, 7, v26
    v_bfe_u32 v28, v21, 2, 1
    v_lshl_add_u32 v{V_PS2}, v28, 3, v26
    s_waitcnt vmcnt(0)
    """)
    for i in range(8): a(f"v_readfirstlane_b32 s{8+i}, v{44+i}")
    for i in range(8): a(f"s_and_b32 s{8+i}, s{8+i}, 8192")
    a(f"""
    ; mem load voffset: copy = xcc&3
    s_getreg_b32 s38, hwreg(HW_REG_XCC_ID)
    s_and_b32 s38, s38, 3
    s_cmp_eq_u32 s38, 1
    s_cselect_b32 s39, s9, s8
    s_cmp_eq_u32 s38, 2
    s_cselect_b32 s39, s10, s39
    s_cmp_eq_u32 s38, 3
    s_cselect_b32 s39, s11, s39
    s_lshl_b32 s38, s38, 21
    s_add_u32 s38, s38, s39
    v_add_u32 v{V_MEMG}, s38, v{V_L16}
    s_add_u32 s35, s12, {PART_BASE}
    s_add_u32 s62, s13, {PART_BASE+PART_SLOT}
    s_add_u32 s63, s14, {PART_BASE+2*PART_SLOT}
    s_add_u32 s64, s15, {PART_BASE+3*PART_SLOT}
    s_mov_b32 s43, 0x3e0293ee
    s_mov_b32 s44, s43
    s_mov_b32 s45, s43
    s_mov_b32 s97, {SENT}
    s_mov_b32 s33, 0
    s_mov_b32 s34, 0
    s_mov_b32 s42, 0
    s_mov_b32 s96, 0
    s_add_u32 s54, s53, 4096
    s_add_u32 s55, s53, 16384
    s_bfe_u32 s14, s40, 0x80008
    s_bfe_u32 s15, s40, 0x80010
    s_and_b32 s40, s40, 255
    s_lshl_b32 s36, s30, 14
    s_add_u32 s36, s36, {KV_BASE}
    s_add_u32 s36, s36, s53
    s_lshl_b32 s56, s31, 12
    s_add_u32 s56, s56, 4096
    s_lshl_b32 s59, s28, 7
    s_add_u32 s59, s59, {FLAG_REC}
    s_mov_b32 s37, {L_KV}
    s_mov_b32 s58, {L_KV+12288}
    s_lshl_b32 s57, s30, 12
    s_lshl_b32 s38, s31, 10
    s_add_u32 s57, s57, s38
    s_add_u32 s57, s57, {KMV_BASE}
    s_add_u32 s9, s30, {F_KV}
    s_lshl_b32 s9, s9, 7
    s_add_u32 s9, s9, {FLAG_BASE}
    s_mov_b32 s10, 0
    s_cmp_eq_u32 s29, 3
    s_cselect_b32 s38, 0, 8
    v_mul_u32_u24 v{V_RL0}, s38, v{V_L16}
    v_and_b32 v{V_PUB}, 16, v{V_L16}
    v_lshlrev_b32 v{V_PUB}, 14, v{V_PUB}
    L_rec_kvw:
    buffer_load_dword v41, off, s[4:7], s9 sc1
    s_waitcnt vmcnt(0)
    v_cmp_gt_u32 vcc, 2, v41
    s_cbranch_vccz L_rec_kvok
    s_sleep 2
    s_add_u32 s10, s10, 1
    s_cmp_lt_u32 s10, 0x40000
    s_cbranch_scc1 L_rec_kvw
    s_branch L_rec_done
    L_rec_kvok:
    """)
    def kv1(j, buf='s58'):
        o = [f"s_add_u32 m0, s39, {4096*j}"]
        if j == 0: o = [f"s_add_u32 s39, {buf}, s53"] + o
        elif j == 1: o += [f"s_add_u32 s38, s36, 4096"]
        else: o += [f"s_add_u32 s38, s38, s56", f"s_add_u32 s36, s36, {32*16384}"]
        o += [f"buffer_load_dwordx4 v{V_L16}, s[4:7], {'s36' if j == 0 else 's38'} offen sc1 lds"]
        return o
    rstamp(a, 10, 41)
    for buf in ('s37',):
        for j in range(3):
            for op in kv1(j, buf): a(op)
    def delay():
        l = a.uniq('L_dl')
        a(f".p2align 3\n{l}:\ns_sub_u32 s38, s38, 1\ns_cbranch_scc0 {l}")
    NST = len(dbg) if dbg else 0
    def stamp(nm):
        if dbg and nm in dbg:
            i = dbg.index(nm); a(f"s_memtime s[{66+2*i}:{67+2*i}]")
    def stamp_end():
        if dbg:
            a("s_waitcnt lgkmcnt(0)")
            a("s_sub_u32 s38, s66, s60\ns_add_u32 s86, s86, s38")
            for i in range(1, NST): a(f"s_sub_u32 s38, s{66+2*i}, s{64+2*i}\ns_add_u32 s{86+i}, s{86+i}, s38")
            a(f"s_mov_b32 s60, s{66+2*(NST-1)}")
            if trace:
                for i in range(NST): a(f"v_writelane_b32 v{M+38}, s{66+2*i}, {i}")
                a(f"v_writelane_b32 v{M+38}, s42, 10\nv_writelane_b32 v{M+38}, s98, 11")
                a(f"s_lshl_b32 s38, s28, 2\ns_add_u32 s38, s38, s29\ns_lshl_b32 s38, s38, 6\ns_add_u32 s38, s38, s33\ns_lshl_b32 s38, s38, 8\ns_add_u32 s38, s38, {100*MB}")
                a(f"v_lshrrev_b32 v{M+39}, 2, v{V_L16}\nbuffer_store_dword v{M+38}, v{M+39}, s[4:7], s38 offen")
    if dbg:
        a("s_memtime s[60:61]\ns_waitcnt lgkmcnt(0)")
        for i in range(NST): a(f"s_mov_b32 s{86+i}, 0\ns_mov_b32 s{66+2*i}, s60")
        a("s_mov_b32 s61, s60")
    a("s_waitcnt vmcnt(0) lgkmcnt(0)\ns_barrier")
    q = [ACC, ACC+4]; k = [ACC+8, ACC+12]; vv = ACC+16
    X = M; VX = M+16; VMr = M+32; S = ACC; P = ACC+12; T = V_T0; U = V_T1
    def smf(d, b, w): a(f"v_smfmac_f32_16x16x64_bf16 {vr(d,4)}, {vr(M+4*b,4)}, {w}, v{V_IDX}")
    def kmv_pub():
        a(f"v_and_b32 v{VX+8}, 32, v{V_L16}")
        a(f"v_mul_u32_u24 v{VX+8}, 63, v{VX+8}")
        a(f"v_lshrrev_b32 v{VX+8}, 1, v{VX+8}")
        a(f"s_lshl_b32 s39, s31, 11")
        a(f"v_add3_u32 v{VX+8}, v{VX+8}, v{V_ZR}, s39")
        a(f"v_add_u32 v{VX+9}, {L_VM}, v{V_L16}")
        a(f"ds_read_b64_tr_b16 {vr(VX,2)}, v{VX+8} offset:16")
        a(f"ds_read_b64_tr_b16 {vr(VX+2,2)}, v{VX+8} offset:{16+128}")
        a(f"ds_read_b128 {vr(VX+4,4)}, v{VX+9}")
        a("s_waitcnt lgkmcnt(0)")
        a(f"buffer_store_dwordx4 {vr(VX,4)}, v{V_L16}, s[4:7], s57 offen sc1")
        a(f"buffer_store_dwordx4 {vr(VX+4,4)}, v{V_L16}, s[4:7], s57 offen offset:2048 sc1")
    def flag_pub(sval):
        a(f"v_mov_b32 v{VX+10}, {sval}")
        a(f"buffer_store_dword v{VX+10}, off, s[4:7], s59 sc1")
    def prep(kvbuf, loads=True):
        a(f"v_add_u32 v{V_T0}, {kvbuf}, v{V_L16}")
        for i in range(8): a(f"ds_read_b128 {vr(KX+4*i,4)}, v{V_T0} offset:{i*1024}")
        for i in range(20): a(f"v_mov_b32 v{ACC+i}, 0")
    def post(t):
        o = [f"v_permlane32_swap_b32 v{q[t]+r}, v{k[t]+r}" for r in range(4)]
        o += [f"v_add_f32 v{q[t]+r}, v{q[t]+r}, v{k[t]+r}" for r in range(4)]
        o += [f"v_cvt_pk_bf16_f32 v{k[t]}, v{q[t]}, v{q[t]+1}", f"v_cvt_pk_bf16_f32 v{k[t]+1}, v{q[t]+2}, v{q[t]+3}",
              f"ds_write_b64 v{V_ZW}, {vr(k[t],2)} offset:{t*512}"]
        return o
    def top():
        a("s_lshr_b32 s50, s33, 2\ns_lshl_b32 s50, s50, 14\ns_add_u32 s50, s50, s35\ns_add_u32 s50, s50, 0x140000\ns_lshl_b32 s49, s28, 7\ns_add_u32 s49, s49, s50")
        a("s_add_u32 s11, s33, 2\ns_min_u32 s11, s11, 64\ns_cmp_eq_u32 s29, 3\ns_cselect_b32 s50, s9, s50")
        a(f"v_add_u32 v{V_T1}, {L_MEM}, v{V_L16}")
    prep('s37', False)
    top()
    a("s_memrealtime s[98:99]\ns_cmp_eq_u32 s29, 2\ns_cbranch_scc1 L_rec_g0ok\ns_waitcnt lgkmcnt(0)\ns_branch L_rec_go")
    a("L_rec_step:")
    stamp(0)
    a("s_cmp_lg_u32 s29, 2\ns_cbranch_scc1 L_rec_no3")
    a(f"""
    L_rec_ts:
    v_cmp_gt_i32 vcc, 0, v{V_SEL}
    v_subrev_u32 v{U}, s98, v{V_SEL}
    s_cbranch_vccnz L_rec_failT
    v_lshlrev_b32 v{U}, 1, v{U}
    v_max_i32_dpp v{U}, v{U}, v{U} row_ror:1 row_mask:0xf bank_mask:0xf
    v_max_i32_dpp v{U}, v{U}, v{U} row_ror:2 row_mask:0xf bank_mask:0xf
    v_max_i32_dpp v{U}, v{U}, v{U} row_ror:4 row_mask:0xf bank_mask:0xf
    v_max_i32_dpp v{U}, v{U}, v{U} row_ror:8 row_mask:0xf bank_mask:0xf
    v_readlane_b32 s38, v{U}, 0
    v_readlane_b32 s39, v{U}, 16
    v_readlane_b32 s51, v{U}, 32
    v_readlane_b32 s65, v{U}, 48
    s_max_i32 s38, s38, s39
    s_max_i32 s51, s51, s65
    s_max_i32 s38, s38, s51
    s_min_i32 s38, s38, 4000
    s_mul_i32 s38, s38, 14
    s_ashr_i32 s38, s38, 5
    s_add_i32 s38, s38, s40
    s_max_i32 s38, s38, 0
    """)
    delay()
    stamp('A0')
    def g0ld():
        for i in range(4): a(f"buffer_load_dwordx4 {vr(M+4*i,4)}, v{V_MEMG}, s[4:7], s34 offen offset:{i*1024} sc1")
    def g12(wait):
        a(f"s_mov_b32 m0, {L_MEM+4096}\ns_add_u32 s19, s34, 4096")
        if wait: a("s_mov_b32 s38, s14"); delay()
        for i in range(4): a(f"buffer_load_dwordx4 v{V_MEMG}, s[4:7], s19 offen offset:{i*1024} sc1 lds")
        a(f"s_mov_b32 m0, {L_MEM+8192}\ns_add_u32 s19, s34, 16384")
        if wait: a("s_mov_b32 s38, s15"); delay()
        for i in range(2): a(f"buffer_load_dwordx4 v{V_MEMG}, s[4:7], s19 offen offset:{i*1024} sc1 lds")
    def g0chk(nafter):
        for i in range(4):
            a(f"s_waitcnt vmcnt({nafter+3-i})")
            a(f"ds_write_b128 v{V_T1}, {vr(M+4*i,4)} offset:{i*1024}")
            if i == 0: a(f"s_memrealtime s[98:99]\nv_max3_u32 v{V_T0}, v{M}, v{M+1}, v{M+2}")
            else: a(f"v_max3_u32 v{V_T0}, v{V_T0}, v{M+4*i-1}, v{M+4*i}\nv_max3_u32 v{V_T0}, v{V_T0}, v{M+4*i+1}, v{M+4*i+2}")
        a(f"v_max_u32 v{V_T0}, v{V_T0}, v{M+15}\nv_cmp_eq_u32 vcc, s97, v{V_T0}")
    g0ld()
    g12(True)
    top()
    g0chk(6)
    a("s_cbranch_vccnz L_rec_g0bad\nL_rec_g0ok:")
    def tspub():
        a(f"s_waitcnt lgkmcnt(0)\ns_and_b32 s98, s98, 0x7fffffff\nv_mov_b32 v{M+16}, s98\nbuffer_store_dword v{M+16}, v{V_PUB}, s[4:7], s49 offen sc1")
    tspub()
    a("s_branch L_rec_go")
    a("L_rec_no3:")
    top()
    a(f"s_cmp_lg_u32 s29, 3\ns_cbranch_scc1 L_rec_sok\nL_rec_sc:\nv_cmp_gt_u32 vcc, s11, v{V_SEL}\ns_cbranch_vccnz L_rec_slow\nL_rec_sok:")
    a("s_waitcnt lgkmcnt(0)")
    stamp('A1')
    a("L_rec_go:")
    a("s_barrier")
    stamp(1)
    rdm = lambda b: f"ds_read_b128 {vr(M+4*b,4)}, v{V_T1} offset:{b*1024}"
    for b in range(4): a(rdm(b))
    fill = {j: [] for j in range(40)}
    pre = {j: [] for j in range(40)}
    for b in range(4): pre[4*b].append(f"s_waitcnt lgkmcnt({3-b})")
    fill[G1AT] += ["s_waitcnt vmcnt(3)", "s_barrier"] + [rdm(b) for b in range(4, 8)]
    pre[12] = ["s_waitcnt lgkmcnt(4)"] if G1AT < 12 else pre[12]
    pre[8] = ["s_waitcnt lgkmcnt(0)"]
    for b in range(4, 8): pre[4*b].append(f"s_waitcnt lgkmcnt({7-b if 4*b <= G2AT else 2+7-b})")
    fill[G2AT] += ["s_waitcnt vmcnt(1)", "s_barrier", rdm(8), rdm(9)]
    pre[30].append("s_waitcnt lgkmcnt(0)")
    chk = [(f"v_max3_u32 v{V_T0}, v{M+16}, v{M+17}, v{M+18}", 18)]
    for i in range(19, 39, 2): chk.append((f"v_max3_u32 v{V_T0}, v{V_T0}, v{M+i}, v{M+i+1}", i+1))
    chk += [(f"v_max_u32 v{V_T0}, v{V_T0}, v{M+39}", 39), (f"v_cmp_eq_u32 vcc, s97, v{V_T0}", 39)]
    pos = 16
    for x, (op, last) in enumerate(chk):
        blk = last // 4
        pos = max(pos, 4*blk if blk < 8 else 30)
        fill[pos].append(op)
        if not (blk >= 8 and x % 2 == 1): pos += 1
    fill[pos+1] += ["s_cbranch_vccnz L_rec_failA", "L_rec_okA:"]
    assert pos + 2 <= 37, pos
    seqm = []
    for b in range(8): seqm += [(q[0], b, wq(0,b)), (k[0], b, wk(0,b)), (q[1], b, wq(1,b)), (k[1], b, wk(1,b))]
    seqm += [(q[0],8,wq(0,8)), (k[0],8,wk(0,8)), (q[0],9,wq(0,9)), (k[0],9,wk(0,9)), (q[1],8,wq(1,8)), (k[1],8,wk(1,8)), (q[1],9,wq(1,9)), (k[1],9,wk(1,9))]
    fill[37] += kv1(0); fill[38] += kv1(1)
    for n, (d, b, w) in enumerate(seqm):
        for op in pre[n]: a(op)
        smf(d, b, w)
        for op in fill[n]: a(op)
    stamp(2)
    for op in post(0): a(op)
    for op in post(1): a(op)
    for b in range(0, 4):
        smf(vv, b, wv(b))
        if b == 0:
            for op in kv1(2): a(op)
        if b == 1: a(f"v_add_u32 v{V_T0}, s37, v{V_L16}")
    a("s_waitcnt lgkmcnt(0)")
    a("s_barrier")
    stamp(3)
    for ks in range(4):
        a(f"ds_read_b64_tr_b16 {vr(X+4*ks,2)}, v{V_ZR} offset:{ks*1024}")
        a(f"ds_read_b64_tr_b16 {vr(X+4*ks+2,2)}, v{V_ZR} offset:{ks*1024+128}")
        smf(vv, 4+ks, wv(4+ks))
    for b in range(8, 10):
        a(f"v_mov_b32 v{S+8+2*(b-8)}, v{V_CM}"); a(f"v_mov_b32 v{S+9+2*(b-8)}, v{V_CM}")
        smf(vv, b, wv(b))
    vpost = [f"v_permlane32_swap_b32 v{vv}, v{vv+2}", f"v_permlane32_swap_b32 v{vv+1}, v{vv+3}",
             f"v_add_f32 v{vv}, v{vv}, v{vv+2}", f"v_add_f32 v{vv+1}, v{vv+1}, v{vv+3}",
             f"v_cvt_pk_bf16_f32 v{vv}, v{vv}, v{vv+1}", f"ds_write_b32 v{V_VW}, v{vv}",
             f"v_mov_b32 v{ACC+18}, 0x3f803f80", f"v_mov_b32 v{ACC+19}, 0x3f803f80"]
    vxr = [f"ds_read_b128 {vr(VX+4*i,4)}, v{V_T0} offset:{8192+i*1024}" for i in range(4)]
    tl = ["s_cbranch_scc1 L_rec_ntl", f"buffer_load_dword v{V_SEL}, v{V_RL0}, s[4:7], s50 offen sc1", "L_rec_ntl:"]
    sfill = [[vxr[0]], [vxr[1]], [vxr[2]], [vxr[3]], [vpost[0]], [vpost[1]], vpost[2:4], [vpost[4]], [vpost[5], "s_cmp_lt_u32 s29, 2"], vpost[6:8], tl, []]
    n = 0
    for ks in range(4):
        if ks == 0: a("s_waitcnt lgkmcnt(6)")
        if ks == 1: a("s_waitcnt lgkmcnt(3)")
        xo = vr(X+4*ks,4)
        for ins in (f"v_mfma_f32_16x16x32_bf16 {vr(S+8,4)}, {xo}, {xo}, {vr(S+8,4)}",
                    f"v_mfma_f32_16x16x32_bf16 {vr(S,4)}, {vr(KX+4*ks,4)}, {xo}, {'0' if ks==0 else vr(S,4)}",
                    f"v_mfma_f32_16x16x32_bf16 {vr(S+4,4)}, {vr(KX+16+4*ks,4)}, {xo}, {'0' if ks==0 else vr(S+4,4)}"):
            a(ins)
            for op in sfill[n]: a(op)
            n += 1
    stamp(4)
    a(f"s_cmp_ge_u32 s33, {nsteps}\ns_cbranch_scc1 L_rec_last")
    def freg(j):
        if j < 4: return KX+8*j
        if j < 7: return VX+8*(j-4)
        return KX+8*(j-7)
    def rdf(j, hh): return f"ds_read_b128 {vr(freg(j)+4*hh,4)}, v{V_WA} offset:{L_WO+j*2048+hh*1024}"
    for j in (0, 1): a(rdf(j,0)); a(rdf(j,1))
    a(f"""
    v_max3_f32 v{T}, v{S+8}, v{S+9}, v{S+10}
    v_max3_f32 v{P}, v{S+11}, v{S}, v{S+1}
    v_max3_f32 v{T}, v{T}, v{S+2}, v{S+3}
    v_max3_f32 v{P}, v{P}, v{S+4}, v{S+5}
    v_max3_f32 v{T}, v{T}, v{S+6}, v{S+7}
    v_max_f32 v{T}, v{T}, v{P}
    v_mov_b32 v{P}, v{T}
    {rdf(2,0)}
    {rdf(2,1)}
    v_permlane32_swap_b32 v{T}, v{P}
    v_max_f32 v{T}, v{T}, v{P}
    v_mov_b32 v{P}, v{T}
    s_waitcnt lgkmcnt(6)
    s_barrier
    v_permlane16_swap_b32 v{T}, v{P}
    v_max_f32 v{T}, v{T}, v{P}
    v_fma_f32 v{T}, v{T}, s43, v{V_BIG}
    """)
    stamp(5)
    for i in range(0, 12, 2): a(f"v_pk_fma_f32 {vr(S+i,2)}, {vr(S+i,2)}, s[44:45], {vr(T,2)} op_sel_hi:[1,1,0] neg_lo:[0,0,1] neg_hi:[0,0,1]")
    O = X
    def cvp(i): return f"v_cvt_pk_bf16_f32 v{P+i}, v{S+2*i}, v{S+2*i+1}"
    def dup(i): return f"v_mov_b32_dpp v{P+i}, v{P+i} row_shr:8 row_mask:0xf bank_mask:0xf"
    ex = lambda i: f"v_exp_f32 v{S+i}, v{S+i}"
    vmr = lambda i: f"ds_read_b64 {vr(VMr+2*i,2)}, v{V_VR} offset:{i*256}"
    for op in [ex(0), vmr(0), ex(1), vmr(1), ex(2), vmr(2), cvp(0), ex(3), vmr(3), ex(4), cvp(1), dup(0), ex(5), ex(6), cvp(2), dup(1), ex(7), ex(8), cvp(3), dup(2), ex(9), dup(3), ex(10), ex(11)]: a(op)
    stamp(6)
    LS = S+8
    z = lambda r: f"v_mov_b32 v{r}, 0"
    lm = lambda j: f"v_mfma_f32_16x16x16_bf16 {vr(LS,4)}, {vr(P+2*j,2)}, {vr(ACC+18,2)}, {'0' if j==0 else vr(LS,4)}"
    rc = [f"v_rcp_f32 v{LS+r}, v{LS+r}" for r in range(4)]
    cv = [f"v_cvt_pk_bf16_f32 v{O+i}, v{O+2*i}, v{O+2*i+1}" for i in range(8)]
    px = lambda t: f"v_mfma_f32_16x16x32_bf16 {vr(O+4*t,4)}, {vr(VX+4*t,4)}, {vr(P,4)}, 0"
    pm = lambda t: f"v_mfma_f32_16x16x16_bf16 {vr(O+4*t,4)}, {vr(VMr+2*t,2)}, {vr(P+4,2)}, {vr(O+4*t,4)}"
    for op in [px(0), cvp(4), cvp(5), px(1), rdf(3,0), rdf(3,1), px(2), dup(4), dup(5), px(3), z(S), z(S+1),
               "s_waitcnt lgkmcnt(2)", pm(0), rdf(4,0), z(S+2), z(S+3), pm(1), rdf(4,1), z(S+4), z(S+5), pm(2), rdf(5,0), z(S+6), z(S+7), pm(3), rdf(5,1),
               lm(0), cv[0], cv[1], lm(1), cv[2], cv[3], lm(2), cv[4], cv[5]]: a(op)
    stamp(7)
    accs = [S, S+4, ACC+12, X+8, X+12]
    OUT = [ACC+16, KX+24, KX+28]
    def fin(i):
        o = OUT[i >> 1] + 2*(i & 1); c = accs[i]
        return [f"v_mul_f32 v{c+r}, v{LS+r}, v{c+r}" for r in range(4)] + [f"v_cvt_pk_bf16_f32 v{o}, v{c}, v{c+1}", f"v_cvt_pk_bf16_f32 v{o+1}, v{c+2}, v{c+3}"]
    order = [0, 2, 1, 3, 4, 5, 6, 7, 8, 9]
    st = [f"buffer_store_dwordx4 {vr(OUT[0],4)}, v{V_PS4}, s[4:7], s35 offen sc1",
          f"buffer_store_dwordx4 {vr(OUT[1],4)}, v{V_PS4}, s[4:7], s38 offen sc1",
          f"buffer_store_dwordx2 {vr(OUT[2],2)}, v{V_PS2}, s[4:7], s35 offen sc1"]
    f0, f1, f2, f3, f4 = [fin(i) for i in range(5)]
    wf = [[cv[6], cv[7]],
          [rdf(6,0), rdf(6,1), rdf(7,0), rdf(7,1)],
          [rc[0], rdf(9,0), rdf(9,1)],
          [rc[1], rc[2], rc[3], rdf(8,0), rdf(8,1), z(ACC+12), z(ACC+13)] + f0 + f1 + [st[0], z(ACC+14), z(ACC+15), z(X+8), z(X+9)],
          [z(X+10), z(X+11)], [z(X+12), z(X+13)], [z(X+14), z(X+15)], [], [], []]
    a(f"s_add_u32 s38, s35, {32*16384}")
    outst = [(3,0),(3,1),(4,0),(4,1),(5,0),(5,1)]
    for x, j in enumerate(order):
        if (j,1) in outst:
            idx = outst.index((j,1))
            a(f"s_waitcnt lgkmcnt({min(15, len(outst)-1-idx)})")
            outst = outst[idx+1:]
        a(f"v_smfmac_f32_16x16x64_bf16 {vr(accs[j>>1],4)}, {vr(O+4*(j&1),4)}, {vr(freg(j),8)}, v{V_IDX}")
        for op in wf[x]:
            a(op)
            if op.startswith('ds_read'):
                o_ = int(op.split('offset:')[1]) - L_WO; outst.append((o_//2048, (o_//1024)&1))
            if op == st[0]: stamp('S0')
    for op in f2 + f3 + [st[1]] + f4 + [st[2]]: a(op)
    stamp(8)
    a("s_memrealtime s[100:101]\ns_waitcnt vmcnt(3)\ns_barrier")
    a("s_cmp_lg_u32 s29, 3\ns_cbranch_scc1 L_rec_n3")
    kmv_pub()
    flag_pub('s33')
    a("L_rec_n3:")
    prep('s58')
    a(f"""
    L_rec_next:
    s_add_u32 s33, s33, 1
    s_add_u32 s34, s34, {MEM_STEP}
    s_add_u32 s57, s57, {32*4096}
    s_mov_b32 s38, s35
    s_mov_b32 s35, s62
    s_mov_b32 s62, s63
    s_mov_b32 s63, s64
    s_mov_b32 s64, s38
    s_mov_b32 s38, s37
    s_mov_b32 s37, s58
    s_mov_b32 s58, s38
    """)
    stamp(9)
    stamp_end()
    PA = M
    a(f"""
    s_branch L_rec_step
    L_rec_failA:
    s_cmp_eq_u32 s33, 0
    s_cbranch_scc1 L_rec_okA
    s_barrier
    s_add_u32 s51, s34, s53
    s_add_u32 s65, s34, s54
    s_add_u32 s39, s34, s55
    v_add_u32 v{M+32}, s53, v{V_T1}
    v_mov_b32 v{PA+8}, 0
    v_mov_b32 v{PA+9}, 0
    v_mov_b32 v{PA+10}, 0
    v_mov_b32 v{PA+11}, 0
    """)
    for i in range(16): a(f"v_mov_b32 v{ACC+i}, 0")
    a(f"""
    L_rec_pollA:
    s_add_u32 s42, s42, 1
    s_bitcmp1_b32 s42, 15
    s_cbranch_scc1 L_rec_done
    buffer_load_dwordx4 {vr(PA,4)}, v{V_MEMG}, s[4:7], s51 offen sc1
    buffer_load_dwordx4 {vr(PA+4,4)}, v{V_MEMG}, s[4:7], s65 offen sc1
    s_cmp_ge_u32 s29, 2
    s_cbranch_scc1 L_rec_pa2
    buffer_load_dwordx4 {vr(PA+8,4)}, v{V_MEMG}, s[4:7], s39 offen sc1
    L_rec_pa2:
    s_waitcnt vmcnt(0)
    v_max3_u32 v{V_T0}, v{PA}, v{PA+1}, v{PA+2}
    v_max3_u32 v{M+33}, v{PA+3}, v{PA+4}, v{PA+5}
    v_max3_u32 v{V_T0}, v{V_T0}, v{PA+6}, v{PA+7}
    v_max3_u32 v{M+33}, v{M+33}, v{PA+8}, v{PA+9}
    v_max3_u32 v{V_T0}, v{V_T0}, v{PA+10}, v{PA+11}
    v_max_u32 v{V_T0}, v{V_T0}, v{M+33}
    v_cmp_eq_u32 vcc, s97, v{V_T0}
    s_cbranch_vccnz L_rec_pollA
    ds_write_b128 v{M+32}, {vr(PA,4)}
    ds_write_b128 v{M+32}, {vr(PA+4,4)} offset:4096
    ds_write_b128 v{M+32}, {vr(PA+8,4)} offset:8192
    s_waitcnt lgkmcnt(0)
    s_branch L_rec_go
    L_rec_g0bad:
    s_add_u32 s96, s96, 1
    s_bitcmp1_b32 s96, 17
    s_cbranch_scc1 L_rec_done
    """)
    g0ld()
    g0chk(0)
    a("s_cbranch_vccnz L_rec_g0bad")
    g12(False)
    a(f"""
    s_branch L_rec_g0ok
    L_rec_slow:
    buffer_load_dword v{V_SEL}, off, s[4:7], s9 sc1
    s_add_u32 s10, s10, 1
    s_waitcnt vmcnt(0)
    s_cmp_lt_u32 s10, 0x40000
    s_cbranch_scc1 L_rec_sc
    s_branch L_rec_done
    L_rec_failT:
    s_add_u32 s42, s42, 0x10000
    s_cmp_ge_u32 s42, 0x80000000
    s_cbranch_scc1 L_rec_done
    buffer_load_dword v{V_SEL}, v{V_RL0}, s[4:7], s50 offen sc1
    s_waitcnt vmcnt(0) lgkmcnt(0)
    s_sub_u32 s98, s98, s100
    s_memrealtime s[100:101]
    s_waitcnt lgkmcnt(0)
    s_add_u32 s98, s98, s100
    s_branch L_rec_ts
    L_rec_last:
    s_waitcnt lgkmcnt(0)
    s_barrier
    s_cmp_lg_u32 s29, 3
    s_cbranch_scc1 L_rec_done
    """)
    kmv_pub()
    a("s_waitcnt vmcnt(0)")
    flag_pub(64)
    a("L_rec_done:\ns_waitcnt vmcnt(0)")
```

```python
import sys; sys.path.insert(0,'tools'); sys.path.insert(0,'gen')
from gasm import *
from layout import *
import rec2 as rec, g1, att, g3, helper

NAME = "gated_mix__memory_aug_recurrent_mem_tr__glu_gated_swiglu__prompt"

def kwrap(name, body, vgpr, accum, sgpr=102):
    return f""".text
.globl {name}
.p2align 8
.type {name},@function
{name}:
{body}
  s_endpgm
.section .rodata,"a"
.p2align 6
.amdhsa_kernel {name}
  .amdhsa_next_free_vgpr {vgpr}
  .amdhsa_next_free_sgpr {sgpr}
  .amdhsa_accum_offset {accum}
  .amdhsa_group_segment_fixed_size 0
  .amdhsa_kernarg_size 120
  .amdhsa_user_sgpr_count 2
  .amdhsa_user_sgpr_kernarg_segment_ptr 1
  .amdhsa_system_sgpr_workgroup_id_x 1
.end_amdhsa_kernel
"""

def gen_main(CODE_BYTES=1024, dA=46|(6<<8)|(4<<16), dB=100|(6<<10)|(4<<18), dbg=None, params=False, rkw={}, roles=('rec','g1','att','g3')):
    import layout; layout.DBG = dbg is not None
    a = Asm()
    a(f"""
    s_cmp_ge_u32 s2, 256
    s_cbranch_scc1 {'L_end2' if dbg is not None else 'L_end'}
    s_load_dwordx2 s[4:5], s[0:1], 112
    s_getpc_b64 s[8:9]
    v_lshlrev_b32 v1, 7, v0
    v_min_u32 v2, {CODE_BYTES}, v1
    global_load_dword v255, v2, s[8:9]
    v_add_u32 v1, 32768, v1
    v_min_u32 v2, {CODE_BYTES}, v1
    global_load_dword v255, v2, s[8:9]
    s_mov_b32 s6, 0x10000000
    s_mov_b32 s7, 0x20000
    s_and_b32 s38, s2, 7
    s_lshr_b32 s39, s2, 3
    s_waitcnt lgkmcnt(0)
    """)
    if dbg is not None:
        a(f"""
        s_memrealtime s[20:21]
        s_lshl_b32 s22, s2, 7
        s_add_u32 s22, s22, {FLAG_BASE+262144}
        s_waitcnt lgkmcnt(0)
        v_mov_b32 v1, s20
        buffer_store_dword v1, off, s[4:7], s22
        s_mov_b32 vcc_hi, s22
        v_mov_b32 v1, s22
        v_accvgpr_write_b32 a255, v1
        """)
    a(f"""
    s_cmp_lt_u32 s38, 4
    s_cbranch_scc1 L_m_nopf
    s_cmp_lt_u32 s39, 8
    s_cbranch_scc1 L_m_nopf
    """)
    helper.prefetch(a, False)
    a(f"""
    L_m_nopf:
    s_cmp_ge_u32 s38, 4
    s_cbranch_scc1 L_m_hi
    s_cmp_lt_u32 s39, 16
    s_cbranch_scc1 L_m_rec
    s_sub_u32 s30, s39, 16
    s_lshl_b32 s30, s30, 2
    s_add_u32 s30, s30, s38
    s_branch L_hlp
    L_m_hi:
    s_sub_u32 s38, s38, 4
    ; y<8: KV(4y+x)
    s_mov_b32 s28, 0
    s_lshl_b32 s30, s39, 2
    s_add_u32 s30, s30, s38
    s_cmp_lt_u32 s39, 8
    s_cbranch_scc1 L_g1
    ; y 8..11: ATT
    s_sub_u32 s30, s30, 32
    s_cmp_lt_u32 s39, 12
    s_cbranch_scc1 L_att
    ; y 12..31: x<2: G3 set x ; x=2: Q (16) ; x=3: F (14)
    s_sub_u32 s30, s39, 12
    s_mov_b32 s28, s38
    s_cmp_lt_u32 s38, 2
    s_cbranch_scc1 L_g3
    s_sub_u32 s28, s38, 1
    s_lshl_b32 s39, s28, 1
    s_sub_u32 s39, 18, s39
    s_cmp_lt_u32 s30, s39
    s_cbranch_scc1 L_g1
    s_branch L_end
    L_m_rec:
    """)
    if True:
        a(f"""
        s_lshr_b32 s28, s39, 1
        s_lshl_b32 s28, s28, 2
        s_add_u32 s28, s28, s38
        s_lshl_b32 s28, s28, 1
        s_and_b32 s39, s39, 1
        s_add_u32 s28, s28, s39
        """)
        rec.gen_rec(a, dbg=dbg, **rkw)
        if dbg is not None:
            a("s_memtime s[100:101]\ns_waitcnt lgkmcnt(0)\ns_sub_u32 s100, s100, s3")
            if dbg: a("s_sub_u32 s101, s61, s3")
            a(f"s_lshl_b32 s38, s28, 2\ns_add_u32 s38, s38, s29\ns_lshl_b32 s38, s38, 6\ns_add_u32 s38, s38, {FLAG_BASE+131072}\nv_mov_b32 v20, s38")
            vals = ['s100','s101','s42','s96'] + ([f's{86+i}' for i in range(10)]+['s10','s10'] if dbg else [])
            for i,v in enumerate(vals): a(f"v_mov_b32 v{24+i}, {v}")
            for i in range(len(vals)//4): a(f"buffer_store_dwordx4 v[{24+4*i}:{27+4*i}], v20, s[4:7], 0 offen offset:{16*i}")
        a("s_branch L_end")
    if 'g1' in roles: g1.gen_g1(a)
    if 'att' in roles: att.gen_att(a)
    if 'g3' in roles: g3.gen_g3(a, nset=2)
    helper.gen_helper(a, rkw.get('trace'))
    a("L_end:")
    if dbg is not None:
        a(f"""
        s_waitcnt vmcnt(0)
        s_memrealtime s[20:21]
        s_lshl_b32 s22, s2, 7
        s_lshl_b32 s23, s29, 2
        s_add_u32 s22, s22, s23
        s_add_u32 s22, s22, {FLAG_BASE+262144+4}
        s_waitcnt lgkmcnt(0)
        v_mov_b32 v1, s20
        buffer_store_dword v1, off, s[4:7], s22
        L_end2:
        """)
    return a.finish()

def build_all(**kw):
    ref = open(f'cdna_kernels/{NAME}.s.ref').read().split('\n')
    hdr = [l for l in ref if l.startswith(';') and '@launch' not in l and 'Override' not in l and 'grid=ceil' not in l]
    out = '\n'.join(hdr) + '\n'
    out += f"; @launch kernel={NAME}_kernel grid=(256,1,1) block=(256,1,1) lds=163840\n"
    out += '.amdgcn_target "amdgcn-amd-amdhsa--gfx950"\n'
    import subprocess, re
    tmp = out + kwrap(f'{NAME}_kernel', gen_main(**kw), 512, 256)
    open('_sz.s','w').write(tmp)
    subprocess.run(['clang','-x','assembler','-target','amdgcn-amd-amdhsa','-mcpu=gfx950','-c','_sz.s','-o','_sz.o'],check=True)
    txt = subprocess.run(['llvm-readelf','-S','_sz.o'],capture_output=True,text=True).stdout
    size = int(re.search(r'\.text\s+PROGBITS\s+\S+\s+\S+\s+(\S+)', txt).group(1), 16)
    out += kwrap(f'{NAME}_kernel', gen_main(CODE_BYTES=(size - 64) & ~3, **kw), 512, 256)
    return out

if __name__ == '__main__':
    s = build_all()
    open(f'cdna_kernels/{NAME}.s', 'w').write(s)
    print(len(s), s.count('\n'))
```
